```python
import torch

def _softmax(x, axis=-1):
    return torch.softmax(x, dim=axis)
def _gelu(x):
    return torch.nn.functional.gelu(x, approximate="tanh")
def _silu(x):
    return torch.nn.functional.silu(x)
def _sigmoid(x):
    return torch.sigmoid(x)
def _layernorm(x, axis=-1, eps=1e-5):
    m = x.mean(dim=axis, keepdim=True)
    v = x.var(dim=axis, keepdim=True, unbiased=False)
    return (x - m) / torch.sqrt(v + eps)
def _scatter_add(tgt, idx, src, axis=0):
    return tgt.clone().index_add_(axis, idx, src)
def _segment_sum(src, seg, n):
    out = torch.zeros((n,) + src.shape[1:], dtype=src.dtype)
    return out.index_add_(0, seg, src)
def _pad(x, pw):
    flat = tuple(v for pair in reversed(pw) for v in pair)
    return torch.nn.functional.pad(x, flat)

kernel_name = 'gated_mix__ssm_conv_s4__dense_activation_relu__prompt'

def setup_inputs():

    _w = (lambda a: (lambda t: t.to(torch.bfloat16) if t.is_floating_point() else t)(torch.as_tensor(a)))
    def _A_setup():
        B, L, D, N = 1, 2048, 640, 128
        A_re = -(lambda _x: torch.exp(torch.as_tensor(_x)))((lambda *s: torch.randn(*s, dtype=torch.bfloat16) * 3.2)(D, N))
        A_im = torch.pi * (lambda *s: torch.randn(*s, dtype=torch.bfloat16) * 0.2)(D, N)
        B_re = (lambda *s: torch.randn(*s, dtype=torch.bfloat16) * 0.4)(D, N)
        B_im = (lambda *s: torch.randn(*s, dtype=torch.bfloat16) * 0.4)(D, N)
        C_re = (lambda *s: torch.randn(*s, dtype=torch.bfloat16) * 0.4)(D, N)
        C_im = (lambda *s: torch.randn(*s, dtype=torch.bfloat16) * 0.4)(D, N)
        log_dt = (lambda *s: torch.randn(*s, dtype=torch.bfloat16) * 0.2)(D) * 0.5 - 4.0
        Dskip = (lambda *s: torch.randn(*s, dtype=torch.bfloat16) * 0.4)(D)
        return {
            "u": _w((lambda *s: torch.randn(*s, dtype=torch.bfloat16) * 0.05)(B, L, D)),
            "A_re": _w(A_re),
            "A_im": _w(A_im),
            "B_re": _w(B_re),
            "B_im": _w(B_im),
            "C_re": _w(C_re),
            "C_im": _w(C_im),
            "log_dt": _w(log_dt),
            "Dskip": _w(Dskip),
        }
    _A_in = _A_setup()

    def _B_setup():
        B, S, D, Dff = 1, 2048, 640, 1728
        return {
            "x": _w((lambda *s: torch.randn(*s, dtype=torch.bfloat16) * 0.05)(B, S, D)),
            "w1": _w((lambda *s: torch.randn(*s, dtype=torch.bfloat16) * 0.05)(D, Dff)),
            "w2": _w((lambda *s: torch.randn(*s, dtype=torch.bfloat16) * 0.05)(Dff, D)),
        }
    _B_in = _B_setup()

    return {
        "A_u": _A_in["u"],
        "A_A_re": _A_in["A_re"],
        "A_A_im": _A_in["A_im"],
        "A_B_re": _A_in["B_re"],
        "A_B_im": _A_in["B_im"],
        "A_C_re": _A_in["C_re"],
        "A_C_im": _A_in["C_im"],
        "A_log_dt": _A_in["log_dt"],
        "A_Dskip": _A_in["Dskip"],
        "B_x": _B_in["x"],
        "B_w1": _B_in["w1"],
        "B_w2": _B_in["w2"],
        "gate_w": _w((lambda *s: torch.randn(*s, dtype=torch.bfloat16) * 0.05)(640) * 16.0),
    }

def reference(A_u, A_A_re, A_A_im, A_B_re, A_B_im, A_C_re, A_C_im, A_log_dt, A_Dskip, B_x, B_w1, B_w2, gate_w):
    def _A_ref(u, A_re, A_im, B_re, B_im, C_re, C_im, log_dt, Dskip):
        Bsz, L, D = u.shape
        dt = torch.exp(log_dt)[:, None]
        A = A_re + 1j * A_im
        Bc = B_re + 1j * B_im
        Cc = C_re + 1j * C_im
        logdA = dt * A
        dB = dt * Bc
        l = (lambda x, dt: x.to(dt))(torch.arange(L), A_re.dtype)
        P = torch.exp(logdA[:, :, None] * l[None, None, :])
        K = torch.einsum("dn,dnl,dn->dl", Cc, P, dB).real
        L2 = 2 * L
        Kp = _pad(K, ((0, 0), (0, L)))
        up = (lambda x, *d: x.permute(*d))(u, 0, 2, 1)
        up = _pad(up, ((0, 0), (0, 0), (0, L)))
        Kf = (lambda x, axes=(-2,-1): torch.fft.rfft2(x.float(), dim=axes))(Kp[:, None, :], axes=(-2, -1))
        Uf = (lambda x, axes=(-2,-1): torch.fft.rfft2(x.float(), dim=axes))(up[:, :, None, :], axes=(-2, -1))
        Yf = Uf * Kf[None, :, :, :]
        y = (lambda x, s, axes=(-2,-1): torch.fft.irfft2(x, s=s, dim=axes).to(torch.bfloat16))(Yf, (1, L2), axes=(-2, -1))[:, :, 0, :L]
        y = (lambda x, *d: x.permute(*d))(y, 0, 2, 1) + u * Dskip[None, None, :]
        return y

    def _B_ref(x, w1, w2):
        h = torch.einsum("bsd,df->bsf", x, w1)
        zero = torch.zeros_like(h)
        h = torch.maximum(h, zero)
        return torch.einsum("bsf,fd->bsd", h, w2)

    x = A_u
    g = _sigmoid((x * gate_w).sum(-1, keepdims=True))
    a = _A_ref(x, A_A_re, A_A_im, A_B_re, A_B_im, A_C_re, A_C_im, A_log_dt, A_Dskip)
    b = _B_ref(x, B_w1, B_w2)
    return g * a + (1 - g) * b
```

```python
import re
class Asm:
    def __init__(self):
        self.lines = []
        self.nlabel = 0
        self.vq = []
        self.lq = []
    def __call__(self, s):
        for ln in s.split("\n"):
            ln = ln.strip()
            if ln: self.lines.append(("" if (ln.endswith(":") or ln.startswith(";") or ln.startswith(".")) else "    ") + ln)
    def label(self, base="L"):
        self.nlabel += 1
        return f"{base}_{self.nlabel}"
    def text(self): return "\n".join(self.lines) + "\n"
    def vm(self, s, tag=None):
        self(s); self.vq.append(tag)
    def ds(self, s, tag=None):
        self(s); self.lq.append(tag)
    def _cnt(self, q, tag):
        idx = max((i for i, t in enumerate(q) if t == tag), default=-1)
        if idx < 0: return None
        n = len(q) - 1 - idx
        del q[:idx+1]
        return n
    def wait(self, vm=None, lg=None):
        parts = []
        if vm is not None:
            if vm == "all": n = 0; self.vq.clear()
            else: n = self._cnt(self.vq, vm)
            if n is not None:
                assert n <= 63, n
                parts.append(f"vmcnt({n})")
        if lg is not None:
            if lg == "all": n = 0; self.lq.clear()
            else: n = self._cnt(self.lq, lg)
            if n is not None:
                if n > 15:
                    del self.lq[:n-15]; n = 15
                parts.append(f"lgkmcnt({n})")
        if parts: self("s_waitcnt " + " ".join(parts))
    def reset_q(self): self.vq = []; self.lq = []

def kernel_header(name):
    return f".globl {name}\n.p2align 8\n.type {name},@function\n{name}:\n"

def kernel_desc(name, vgpr, sgpr=102, accum=None):
    if accum is None: accum = min(256, (vgpr + 3) // 4 * 4)
    return f""".p2align 6
.amdhsa_kernel {name}
  .amdhsa_next_free_vgpr {vgpr}
  .amdhsa_next_free_sgpr {sgpr}
  .amdhsa_accum_offset {accum}
  .amdhsa_group_segment_fixed_size 0
  .amdhsa_kernarg_size 128
  .amdhsa_user_sgpr_count 2
  .amdhsa_user_sgpr_kernarg_segment_ptr 1
  .amdhsa_system_sgpr_workgroup_id_x 1
.end_amdhsa_kernel
"""

def srd(a, d, base, nbytes, off=0):
    if off:
        a(f"s_add_u32 s{d}, s{base}, {off:#x}\ns_addc_u32 s{d+1}, s{base+1}, 0")
    else:
        a(f"s_mov_b32 s{d}, s{base}\ns_mov_b32 s{d+1}, s{base+1}")
    a(f"s_mov_b32 s{d+2}, {nbytes:#x}\ns_mov_b32 s{d+3}, 0x00020000")

def vr(b, n=1): return f"v[{b}:{b+n-1}]" if n > 1 else f"v{b}"
def sr(b, n=1): return f"s[{b}:{b+n-1}]" if n > 1 else f"s{b}"

_REG = re.compile(r"\b([vs])(\d+)\b|\b([vs])\[(\d+):(\d+)\]|\b(vcc|exec|m0)\b")
def _regs(tok):
    out = []
    for m in _REG.finditer(tok):
        if m.group(1): out.append((m.group(1), int(m.group(2))))
        elif m.group(3): out += [(m.group(3), i) for i in range(int(m.group(4)), int(m.group(5)) + 1)]
        else: out.append((m.group(6), 0))
    return out
TRANS = ("v_exp_f32", "v_log_f32", "v_rcp_f32", "v_rsq_f32", "v_sqrt_f32", "v_sin_f32", "v_cos_f32")
def parse(ln):
    ln = ln.split(";")[0].strip()
    if not ln or ln.endswith(":") or ln.startswith("."): return None
    p = ln.split(None, 1)
    op = p[0]; ops = [x.strip() for x in re.split(r",(?![^\[]*\])", p[1])] if len(p) > 1 else []
    return op, ops
def rw(op, ops):
    R = lambda i: _regs(ops[i].split(" ")[0]) if i < len(ops) else []
    allr = lambda s: [r for o in ops[s:] for r in _regs(o.split(" ")[0])]
    if op.startswith("v_cmp"):
        return R(0), allr(1)
    if op.startswith("v_readfirstlane") or op.startswith("v_readlane"): return R(0), allr(1)
    if op.startswith(("v_add_co", "v_sub_co", "v_addc_co")): return R(0) + R(1), allr(2)
    if op.startswith(("v_fmac", "v_dot2c")): return R(0), allr(0)
    if op.startswith("v_permlane"): return R(0) + R(1), allr(0)
    if op.startswith("v_"): return R(0), allr(1)
    if op.startswith("buffer_load") or op.startswith("global_load"):
        if " lds" in " " + ops[-1] + " " and op.startswith("buffer"): return [], allr(0) + [("m0", 0)]
        return R(0), allr(1)
    if op.startswith(("buffer_store", "global_store", "buffer_atomic", "ds_write", "ds_add")): return [], allr(0)
    if op.startswith("ds_read"): return R(0), allr(1)
    if op.startswith(("s_cmp", "s_cbranch", "s_branch", "s_waitcnt", "s_nop", "s_barrier", "s_endpgm", "s_setprio", "s_sleep", "buffer_inv", "buffer_wbl2")): return [], allr(0)
    if op.startswith("s_"):
        w = R(0)
        if "saveexec" in op: w = w + [("exec", 0)]
        return w, allr(1)
    raise ValueError(op)
def check_hazards(lines):
    hist = []
    slot = 0; errs = []
    for ln in lines:
        p = parse(ln)
        if p is None: continue
        op, ops = p
        w, r = rw(op, ops)
        isv = op.startswith("v_"); ismf = op.startswith("v_mfma"); isvalu = isv and not ismf
        isvm = op.startswith(("buffer_", "global_")); isds = op.startswith("ds_")
        def need(n, h, why):
            d = slot - h[0] - 1
            if d < n: errs.append(f"{why}: need {n} have {d}: [{h[4].strip()}] -> [{ln.strip()}]")
        for h in hist[-24:]:
            hop, hw, hr = h[1], set(h[2]), h[3]
            hmf = hop.startswith("v_mfma"); hvalu = hop.startswith("v_") and not hmf
            hwv = {x for x in hw if x[0] == "v"}; hws = {x for x in hw if x[0] != "v"}
            rs = set(r); ws = set(w)
            if hvalu:
                if ismf and hwv & rs: need(2, h, "valu->mfma")
                if hop in TRANS and isvalu and op not in TRANS and hwv & rs: need(1, h, "trans->valu")
                if op.startswith(("v_readfirstlane", "v_readlane")) and hwv & rs: need(1, h, "valu->readlane")
                if ("dpp" in op or op.startswith("v_permlane")) and hwv & rs: need(2, h, "valu->dpp/permlane")
                if hws & rs:
                    if isvm: need(5, h, "valu sgpr->vmem")
                    elif isv: need(2, h, "valu sgpr->valu")
                if op.startswith("v_cndmask") and len(ops) == 4 and ops[3] == "vcc" and ("vcc", 0) in hw: need(2, h, "vcc->cndmask")
            if hmf:
                passes = 8 if "32x32" in hop else 4
                big = 12 if passes == 8 else 8
                if ismf:
                    c = set(_regs(ops[3])); ab = set(_regs(ops[1]) + _regs(ops[2]))
                    if hwv & ab: need(big, h, "mfma D->mfma AB")
                    if hwv & c and (c != hwv or hop != op): need(big - 2, h, "mfma D->mfma C partial")
                else:
                    if (isvalu or isvm or isds) and hwv & (rs | ws): need(big, h, "mfma D->use")
                    hp = parse(h[4])[1]
                    if isvalu and set(_regs(hp[3])) & ws: need(7 if passes == 8 else 3, h, "mfma C WAR")
            if hop.startswith("s_") and ("m0", 0) in hw and isvm and ("m0", 0) in rs: need(1, h, "m0->lds dma")
            if hop.startswith(("buffer_store_dwordx4", "buffer_store_dwordx3", "global_store_dwordx4")):
                hp = parse(h[4])[1]
                data = set(_regs(hp[0] if hop.startswith("buffer") else hp[1]))
                if data & ws: need(2 if isvalu else 1, h, "store data WAR")
        hist.append((slot, op, w, r, ln))
        slot += (int(ops[0], 0) + 1) if op == "s_nop" else 1
    return errs
```

```python
import sys
from asmlib import *
NAME = "gated_mix__ssm_conv_s4__dense_activation_relu__prompt"

H_OFF = 0
H_BYTES = 32*54*4096
UT_OFF = 8 << 20
UT_BYTES = 640*2048*2
A_OFF = 12 << 20
G_OFF = 15 << 20
ST_OFF = 16 << 20
WS_SPAN = 32 << 20
LDS_BYTES = 81920
pU, pAre, pAim, pBre, pBim, pCre, pCim, pLdt, pDsk, pBx, pW1, pW2, pGw, pOut, pDbg, pWs = range(16, 48, 2)
dU, dW1, dW2, dWs, dOut, dTmp, dTmp2 = 48, 52, 56, 60, 64, 68, 72
sWave = 3
SC1 = "sc1"
STAMPS = False

def prologue(a):
    a("s_load_dwordx16 s[16:31], s[0:1], 0\ns_load_dwordx16 s[32:47], s[0:1], 64")
    a("v_lshrrev_b32 v2, 6, v0\nv_and_b32 v1, 63, v0")
    a(f"v_readfirstlane_b32 s{sWave}, v2")
    a("s_waitcnt lgkmcnt(0)")
    srd(a, dWs, pWs, WS_SPAN)

def stamp_begin(a):
    if STAMPS: a("s_memrealtime s[96:97]")
def stamp_end(a, slot):
    if not STAMPS: return
    l = a.label()
    a("s_memrealtime s[98:99]\ns_waitcnt lgkmcnt(0)")
    a(f"v_cmp_eq_u32 vcc, 0, v0\ns_and_saveexec_b64 s[94:95], vcc\ns_cbranch_execz {l}")
    a(f"s_lshl_b32 s93, s2, 4\ns_add_u32 s93, s93, {ST_OFF + slot*1024*16}\nv_mov_b32 v2, s93")
    a(f"v_mov_b32 v4, s96\nv_mov_b32 v5, s97\nv_mov_b32 v6, s98\nv_mov_b32 v7, s99")
    a(f"buffer_store_dwordx4 v[4:7], v2, {sr(dWs,4)}, 0 offen\ns_waitcnt vmcnt(0)\n{l}:\ns_mov_b64 exec, -1")

def gemm1(a, sRb, sCg, sK0):
    a.reset_q()
    srd(a, dU, pU, 2048*1280)
    srd(a, dW1, pW1, 640*3456)
    vX0, vX1, vW0, vW1 = 4, 5, 6, 7
    vRX = [[8, 9], [10, 11]]
    vRW = [[12, 13], [14, 15]]
    vH = 16
    F = 20
    ACC = 52
    sX, sW, sKc, sM, sT = 76, 77, 78, 79, 80
    a(f"s_lshl_b32 s{sT}, s{sRb}, 7\ns_lshl_b32 s{sM}, s{sWave}, 5\ns_add_u32 s{sT}, s{sT}, s{sM}")
    a(f"v_lshrrev_b32 v2, 2, v1\nv_add_u32 v2, s{sT}, v2\nv_mul_u32_u24 v2, 1280, v2")
    a(f"v_lshrrev_b32 v3, 4, v1\nv_xor_b32 v{vX0}, v3, v1\nv_and_b32 v{vX0}, 3, v{vX0}\nv_lshl_add_u32 v{vX0}, v{vX0}, 4, v2")
    a(f"v_add_u32 v{vX1}, {16*1280-1024}, v{vX0}")
    a(f"s_lshl_b32 s{sT}, s{sWave}, 3\nv_add_u32 v2, s{sT}, v3\nv_mul_u32_u24 v2, 3456, v2\ns_lshl_b32 s{sT}, s{sCg}, 8\nv_add_u32 v2, s{sT}, v2")
    a(f"v_lshlrev_b32 v{vW0}, 2, v3\nv_xor_b32 v{vW0}, v{vW0}, v1\nv_and_b32 v{vW0}, 15, v{vW0}\nv_lshl_add_u32 v{vW0}, v{vW0}, 4, v2")
    a(f"v_add_u32 v{vW1}, {4*3456-1024}, v{vW0}")
    a(f"s_lshl_b32 s{sM}, s{sWave}, 12")
    a(f"s_mov_b32 s{sKc}, s{sK0}")
    def issue(i):
        slot = i % 5
        a(f"s_lshl_b32 s{sX}, s{sKc}, 6\ns_mul_i32 s{sW}, s{sKc}, {32*3456}\ns_add_u32 m0, s{sM}, {slot*16384}")
        a(f"s_add_u32 s{sKc}, s{sKc}, 1")
        a.vm(f"buffer_load_dwordx4 v{vX0}, {sr(dU,4)}, s{sX} offen lds", ("st", i))
        a.vm(f"buffer_load_dwordx4 v{vX1}, {sr(dU,4)}, s{sX} offen offset:1024 lds", ("st", i))
        a(f"s_add_u32 m0, s{sM}, {slot*16384+2048}\ns_cmp_eq_u32 s{sKc}, 20")
        a.vm(f"buffer_load_dwordx4 v{vW0}, {sr(dW1,4)}, s{sW} offen lds", ("st", i))
        a.vm(f"buffer_load_dwordx4 v{vW1}, {sr(dW1,4)}, s{sW} offen offset:1024 lds", ("st", i))
        a(f"s_cselect_b32 s{sKc}, 0, s{sKc}")
    for i in range(4): issue(i)
    a(f"s_lshr_b32 s{sT}, s{sWave}, 1\ns_lshl_b32 s{sT}, s{sT}, 13")
    a(f"v_and_b32 v2, 31, v1\nv_lshlrev_b32 v2, 6, v2\nv_add_u32 v2, s{sT}, v2")
    a(f"v_lshrrev_b32 v3, 5, v1\nv_bfe_u32 v{vH}, v1, 2, 2\nv_xor_b32 v3, v3, v{vH}\nv_lshl_add_u32 v{vRX[0][0]}, v3, 4, v2")
    a(f"v_xor_b32 v{vRX[1][0]}, 32, v{vRX[0][0]}")
    a(f"v_lshrrev_b32 v2, 5, v1\nv_lshlrev_b32 v2, 12, v2\nv_lshl_add_u32 v2, v{vH}, 8, v2")
    a(f"s_and_b32 s{sT}, s{sWave}, 1\ns_lshl_b32 s{sT}, s{sT}, 1\nv_xor_b32 v3, s{sT}, v{vH}\nv_lshl_add_u32 v2, v3, 6, v2")
    a(f"v_bfe_u32 v3, v1, 4, 1\nv_lshl_add_u32 v2, v3, 5, v2\nv_and_b32 v3, 3, v1\nv_lshl_add_u32 v2, v3, 3, v2")
    a(f"v_add_u32 v{vRW[0][0]}, 2048, v2\nv_xor_b32 v{vRW[1][0]}, 64, v{vRW[0][0]}")
    for t in (vRX, vRW):
        for p in range(2): a(f"v_add_u32 v{t[p][1]}, 0x10000, v{t[p][0]}")
    def reads(i, p):
        slot = i % 5; hi = 1 if slot == 4 else 0; so = (slot % 4) * 16384 if not hi else 0
        b = F + 16*p; L = []
        for bf in range(2):
            for u in range(2):
                L.append(f"ds_read_b64_tr_b16 {vr(b+4*bf+2*u,2)}, v{vRW[bf][hi]} offset:{so + 8192*p + 1024*u}")
        for bt in range(2):
            L.append(f"ds_read_b128 {vr(b+8+4*bt,4)}, v{vRX[p][hi]} offset:{so + 4096*bt}")
        return [L[0], L[1], L[4], L[2], L[3], L[5]]
    def mfmas(p, first):
        b = F + 16*p; L = []
        for bf, bt in ((0,0),(1,0),(0,1),(1,1)):
            c = ACC + 16*(2*bf+bt)
            L.append(f"v_mfma_f32_32x32x16_bf16 {vr(c,16)}, {vr(b+4*bf,4)}, {vr(b+8+4*bt,4)}, {'0' if first else vr(c,16)}")
        return L
    for i in range(20):
        a.wait(vm=("st", i), lg="all")
        a("s_barrier")
        R = reads(i, 0)
        M = mfmas(1, False) if i > 0 else []
        for k in range(4):
            if M: a(M[k])
            for x in R[2*k:2*k+2]: a.ds(x, ("f0", i))
            if k == 3 and i + 4 < 20: issue(i + 4)
        R = reads(i, 1)
        M = mfmas(0, i == 0)
        for x in R[:2]: a.ds(x, ("f1", i))
        a.wait(lg=("f0", i))
        for k in range(4):
            a(M[k])
            for x in R[2+2*k:4+2*k]: a.ds(x, ("f1", i))
    a.wait(lg="all")
    for x in mfmas(1, False): a(x)
    lskip = a.label("L_g1skip")
    a(f"s_and_b32 s{sT}, s{sWave}, 1\ns_lshl_b32 s{sT}, s{sT}, 1\ns_lshl_b32 s{sX}, s{sCg}, 2\ns_add_u32 s{sT}, s{sT}, s{sX}")
    a(f"s_cmp_ge_u32 s{sT}, 54\ns_cbranch_scc1 {lskip}")
    a(f"s_lshr_b32 s{sX}, s{sWave}, 1\ns_lshl_b32 s{sW}, s{sRb}, 1\ns_add_u32 s{sX}, s{sX}, s{sW}\ns_mul_i32 s{sX}, s{sX}, 54\ns_add_u32 s{sX}, s{sX}, s{sT}\ns_lshl_b32 s{sX}, s{sX}, 12")
    a(f"s_add_u32 s{sW}, s{sX}, 4096")
    a(f"v_bfe_u32 v2, v1, 4, 1\nv_lshlrev_b32 v2, 10, v2\nv_lshrrev_b32 v3, 5, v1\nv_lshl_add_u32 v2, v3, 8, v2\nv_and_b32 v3, 15, v1\nv_lshl_add_u32 v{vH}, v3, 4, v2")
    a("s_nop 3")
    n = 0
    for bf, bt in ((0,0),(1,0),(0,1),(1,1)):
        c = ACC + 16*(2*bf+bt)
        for half in range(2):
            d = F + 4*(n % 8); n += 1
            for e in range(4): a(f"v_cvt_pk_bf16_f32 v{d+e}, v{c+8*half+2*e}, v{c+8*half+2*e+1}")
            for e in range(4): a(f"v_pk_max_i16 v{d+e}, v{d+e}, 0")
            a.vm(f"buffer_store_dwordx4 {vr(d,4)}, v{vH}, {sr(dWs,4)}, s{sW if bf else sX} offen offset:{2048*bt + 512*half} {SC1}", "hst")
    a(f"{lskip}:")

def prep(a, sP):
    a.reset_q()
    srd(a, dU, pU, 2048*1280)
    srd(a, dTmp, pGw, 1280)
    sT, sM, sO = 76, 77, 78
    vD = 4
    vT = 14
    vG = 18
    vS = 22
    GW = 24
    XF = 104
    TR = 184
    ACC = 216
    a(f"v_lshrrev_b32 v2, 4, v1\nv_lshlrev_b32 v2, 4, v2")
    for s in range(20): a.vm(f"buffer_load_dwordx4 {vr(GW+4*s,4)}, v2, {sr(dTmp,4)}, 0 offen offset:{64*s}", "gw")
    a(f"s_lshl_b32 s{sT}, s{sP}, 6\ns_lshl_b32 s{sM}, s{sWave}, 4\ns_add_u32 s{sT}, s{sT}, s{sM}\ns_mul_i32 s{sO}, s{sT}, 1280")
    for b in range(5):
        r0 = (64*b) // 80; lim = (r0 + 1) * 80 - 64*b
        a(f"v_cmp_le_u32 vcc, {lim}, v1\nv_mov_b32 v2, {r0}\nv_mov_b32 v3, {r0+1}\nv_cndmask_b32 v2, v2, v3, vcc" if lim < 64 else f"v_mov_b32 v2, {r0}")
        a(f"v_mul_u32_u24 v3, 80, v2\nv_sub_u32 v3, v1, v3\nv_add_u32 v3, {64*b}, v3")
        a(f"v_lshlrev_b32 v{vS}, 1, v2\nv_xor_b32 v3, v3, v{vS}\nv_mul_u32_u24 v2, 1280, v2\nv_lshl_add_u32 v{vD+b}, v3, 4, v2")
        a(f"v_xor_b32 v3, 8, v3\nv_lshl_add_u32 v{vD+5+b}, v3, 4, v2")
    a(f"s_mul_i32 s{sM}, s{sWave}, 20480")
    for aa in range(4):
        for b in range(5):
            a(f"s_add_u32 m0, s{sM}, {(5*aa+b)*1024}\ns_nop 0")
            a.vm(f"buffer_load_dwordx4 v{vD+5*(aa>>1)+b}, {sr(dU,4)}, s{sO} offen lds", "x")
        if aa < 3: a(f"s_add_u32 s{sO}, s{sO}, 5120")
    a(f"v_bfe_u32 v2, v1, 2, 2\nv_sub_u32 v2, 3, v2\nv_bfe_u32 v3, v1, 4, 1")
    a(f"v_lshl_add_u32 v{vS}, v3, 3, v2\nv_mul_u32_u24 v{vS}, 1280, v{vS}\nv_add_u32 v{vS}, s{sM}, v{vS}")
    a(f"v_lshl_add_u32 v2, v3, 2, v2\nv_lshrrev_b32 v3, 5, v1\nv_xor_b32 v2, v2, v3\nv_lshlrev_b32 v2, 5, v2")
    a(f"v_and_b32 v3, 3, v1\nv_lshl_add_u32 v2, v3, 3, v2")
    for m in range(4): a(f"v_xor_b32 v3, {64*m}, v2\nv_add_u32 v{vT+m}, v3, v{vS}")
    a(f"v_and_b32 v2, 15, v1\nv_mul_u32_u24 v{vS}, 1280, v2\nv_add_u32 v{vS}, s{sM}, v{vS}")
    a(f"v_and_b32 v2, 3, v1\nv_bfe_u32 v3, v1, 3, 1\nv_lshl_add_u32 v2, v3, 2, v2\nv_lshlrev_b32 v2, 1, v2\nv_lshrrev_b32 v3, 4, v1\nv_xor_b32 v2, v2, v3\nv_lshlrev_b32 v2, 4, v2")
    for m in range(4): a(f"v_xor_b32 v3, {64*m}, v2\nv_add_u32 v{vG+m}, v3, v{vS}")
    a(f"s_lshr_b32 s{sO}, s{sT}, 3\nv_bfe_u32 v3, v1, 4, 1\nv_add_u32 v3, s{sO}, v3")
    a(f"v_lshrrev_b32 v2, 2, v3\nv_xor_b32 v2, v2, v1\nv_and_b32 v2, 3, v2\nv_lshlrev_b32 v2, 4, v2\nv_lshl_add_u32 v2, v3, 6, v2")
    a(f"v_lshrrev_b32 v3, 5, v1\nv_lshl_add_u32 v2, v3, 16, v2\nv_bfe_u32 v3, v1, 2, 2\nv_lshl_add_u32 v{vS}, v3, 14, v2")
    a(f"s_mov_b32 s{sO}, {UT_OFF}")
    a.wait(vm="all")
    def rd(i):
        d = TR + 4*(i % 8)
        a.ds(f"ds_read_b64_tr_b16 {vr(d,2)}, v{vT+(i&3)} offset:{256*(i>>2)+5120}", ("t", i))
        a.ds(f"ds_read_b64_tr_b16 {vr(d+2,2)}, v{vT+(i&3)} offset:{256*(i>>2)}", ("t", i))
    for i in range(6): rd(i)
    for i in range(20):
        a.wait(lg=("t", i))
        a.vm(f"buffer_store_dwordx4 {vr(TR+4*(i%8),4)}, v{vS}, {sr(dWs,4)}, s{sO} offen {SC1}", ("s", i))
        a(f"s_add_u32 s{sO}, s{sO}, 0x20000")
        if i + 6 < 20:
            rd(i + 6)
    for s in range(20): a.ds(f"ds_read_b128 {vr(XF+4*s,4)}, v{vG+(s&3)} offset:{256*(s>>2)}", ("g", s))
    for s in range(20):
        a.wait(lg=("g", s))
        a(f"v_mfma_f32_16x16x32_bf16 {vr(ACC,4)}, {vr(GW+4*s,4)}, {vr(XF+4*s,4)}, {'0' if s == 0 else vr(ACC,4)}")
    a("s_nop 7")
    a(f"v_cvt_pk_bf16_f32 v2, v{ACC}, v{ACC}\nv_lshlrev_b32 v2, 16, v2\nv_mul_f32 v2, 0xbfb8aa3b, v2\nv_exp_f32 v2, v2\ns_nop 0\nv_add_f32 v2, 1.0, v2\nv_rcp_f32 v2, v2\ns_nop 0")
    a(f"v_cvt_pk_bf16_f32 v2, v2, v2\nv_lshlrev_b32 v2, 16, v2")
    a(f"s_lshl_b32 s{sO}, s{sT}, 2\ns_add_u32 s{sO}, s{sO}, {G_OFF}\nv_lshlrev_b32 v3, 2, v1")
    a("s_mov_b64 exec, 0xffff")
    a.vm(f"buffer_store_dword v2, v3, {sr(dWs,4)}, s{sO} offen {SC1}", "g")
    a("s_mov_b64 exec, -1")

U_BYTES = 18432
SCR = 15872
ROWB = 272
P_OFF = 0; KC_OFF = 8256; Y_OFF = 11264
def ssm(a, sSig, wait_prep=None):
    a.reset_q()
    sD, sT, sDt, sDsk, sScr = 76, 77, 78, 79, 80
    mOdd, m3, mN0 = 82, 84, 86
    a(f"s_lshl_b32 s{sD}, s{sSig}, 2\ns_add_u32 s{sD}, s{sD}, s{sWave}")
    PR = 4
    a(f"s_lshl_b32 s{sT}, s{sD}, 8\nv_lshlrev_b32 v2, 2, v1\nv_add_u32 v2, s{sT}, v2")
    for k, p in enumerate((pAre, pAim, pBre, pBim, pCre, pCim)):
        a.vm(f"global_load_dword v{PR+k}, v2, {sr(p,2)}", "par")
    a(f"s_lshr_b32 s{sT}, s{sD}, 1\ns_lshl_b32 s{sT}, s{sT}, 2")
    a(f"s_load_dword s{sDt}, {sr(pLdt,2)}, s{sT}\ns_load_dword s{sDsk}, {sr(pDsk,2)}, s{sT}")
    a(f"s_mul_i32 s{sScr}, s{sWave}, {SCR}\ns_add_u32 s{sScr}, s{sScr}, {U_BYTES}")
    a(f"v_mov_b32 v10, 0\nv_mov_b32 v11, 0\nv_lshlrev_b32 v3, 3, v0\nds_write_b64 v3, v[10:11]")
    vWr, vRdX, vRdY, vRdY2 = 12, 13, 14, 15
    a(f"v_lshlrev_b32 v{vWr}, 2, v1\nv_add_u32 v{vWr}, s{sScr}, v{vWr}")
    a(f"v_and_b32 v2, 15, v1\nv_lshrrev_b32 v3, 4, v1\nv_lshlrev_b32 v3, 4, v3\nv_add_u32 v3, s{sScr}, v3")
    a(f"v_mul_u32_u24 v{vRdX}, {ROWB}, v2\nv_add_u32 v{vRdX}, v{vRdX}, v3")
    a(f"v_lshrrev_b32 v10, 2, v2\nv_and_b32 v11, 1, v2\nv_lshl_add_u32 v10, v10, 1, v11\nv_add_u32 v10, 48, v10\nv_and_b32 v11, 2, v2\nv_cmp_eq_u32 vcc, 0, v11\nv_mov_b32 v11, 56\ns_nop 0\nv_cndmask_b32 v10, v11, v10, vcc")
    a(f"v_mul_u32_u24 v{vRdY2}, {ROWB}, v10\nv_add_u32 v{vRdY2}, v{vRdY2}, v3")
    a(f"s_mov_b32 s{mOdd}, 0xaaaaaaaa\ns_mov_b32 s{mOdd+1}, 0xaaaaaaaa\ns_mov_b32 s{m3}, 0x88888888\ns_mov_b32 s{m3+1}, 0x88888888\ns_mov_b32 s{mN0}, 0xeeeeeeee\ns_mov_b32 s{mN0+1}, 0xeeeeeeee")
    a("s_waitcnt lgkmcnt(0)")
    a(f"s_bitcmp1_b32 s{sD}, 0\ns_cselect_b32 s{sT}, 0, 16\ns_lshl_b32 s{sDt}, s{sDt}, s{sT}\ns_and_b32 s{sDt}, s{sDt}, 0xffff0000\ns_lshl_b32 s{sDsk}, s{sDsk}, s{sT}\ns_lshr_b32 s{sDsk}, s{sDsk}, 16")
    vDt = 16
    a(f"v_mov_b32 v2, s{sDt}\nv_mul_f32 v3, 0x3fb8aa3b, v2\ns_mov_b32 s{sT}, 0x3fb8aa3b\nv_fma_f32 v10, v2, s{sT}, -v3\nv_fmac_f32 v10, 0x32a57060, v2")
    a(f"v_exp_f32 v3, v3\nv_mul_f32 v10, 0x3f317218, v10\nv_fma_f32 v3, v3, v10, v3\nv_cvt_pk_bf16_f32 v3, v3, v3\nv_lshlrev_b32 v{vDt}, 16, v3")
    Z = 20
    ZC = 52
    Z16 = 68
    X = 70
    T = 76
    O = 92
    KA = 100
    FR = 112
    un = 176
    tcnt = [0]*4; ocnt = [0]*4
    def cmul(D, A_, B_, ch=0):
        t = T + 4*ch + 2*(tcnt[ch] % 2); tcnt[ch] += 1
        return [f"v_pk_mul_f32 {vr(t,2)}, {vr(A_,2)}, {vr(B_,2)} op_sel:[0,0] op_sel_hi:[1,0]",
                f"v_pk_fma_f32 {vr(D,2)}, {vr(A_,2)}, {vr(B_,2)}, {vr(t,2)} op_sel:[1,1,0] op_sel_hi:[0,1,1] neg_lo:[0,1,0]"]
    def put(row, S, ch=0):
        o = O + 2*ch + (ocnt[ch] % 2); ocnt[ch] += 1
        return [f"v_cvt_pk_bf16_f32 v{o}, v{S}, v{S+1}", ("ds", f"ds_write_b32 v{vWr}, v{o} offset:{row*ROWB}")]
    def emit(seq):
        for x in seq:
            if isinstance(x, tuple): a.ds(x[1], "w")
            else: a(x)
    def interleave(*chains):
        out = []; n = max(len(c) for c in chains)
        for i in range(n):
            for c in chains:
                if i < len(c): out.append(c[i])
        return out
    a.wait(vm="par")
    for ps in range(2):
        for k in range(6):
            a(f"v_lshlrev_b32 v{un+k}, 16, v{PR+k}" if ps == 0 else f"v_and_b32 v{un+k}, 0xffff0000, v{PR+k}")
        ar_, ai_, br_, bi_, cr_, ci_ = range(un, un+6)
        a(f"v_mul_f32 v{ar_}, v{vDt}, v{ar_}\nv_mul_f32 v{ai_}, v{vDt}, v{ai_}\nv_mul_f32 v{br_}, v{vDt}, v{br_}\nv_mul_f32 v{bi_}, v{vDt}, v{bi_}")
        a(f"v_mul_f32 v{ar_}, 0x3fb8aa3b, v{ar_}\nv_mul_f32 v{ai_}, 0.15915494, v{ai_}")
        m = un + 6
        for k, e in enumerate((1.0, 16.0, 256.0)):
            lit = {1.0: "1.0", 16.0: "0x41800000", 256.0: "0x43800000"}[e]
            a(f"v_mul_f32 v{m+k}, {lit}, v{ar_}\nv_mul_f32 v{m+3+k}, {lit}, v{ai_}")
        for k in range(3): a(f"v_fract_f32 v{m+3+k}, v{m+3+k}")
        for k in range(3): a(f"v_exp_f32 v{m+k}, v{m+k}")
        for k in range(3): a(f"v_cos_f32 v{m+6+k}, v{m+3+k}\nv_sin_f32 v{m+9+k}, v{m+3+k}")
        emit(cmul(X, cr_, br_))
        a(f"v_mul_f32 v{Z+2}, v{m}, v{m+6}\nv_mul_f32 v{Z+3}, v{m}, v{m+9}")
        a(f"v_mul_f32 v{Z16}, v{m+1}, v{m+7}\nv_mul_f32 v{Z16+1}, v{m+1}, -v{m+10}")
        a(f"v_mul_f32 v{ZC}, v{m+2}, v{m+8}\nv_mul_f32 v{ZC+1}, v{m+2}, v{m+11}")
        a(f"v_xor_b32 v{X+1}, 0x80000000, v{X+1}")
        if ps == 1: a.wait(lg="all")
        cX = put(0, X)
        for i in range(1, 16):
            cX += cmul(X + 2*(i & 1), X + 2*((i-1) & 1), Z16) + put(i, X + 2*(i & 1))
        cZ = [f"v_mov_b32 v{un+18}, 0x3f80", ("ds", f"ds_write_b32 v{vWr}, v{un+18} offset:{16*ROWB}")] + put(17, Z+2, 1)
        for f in range(2, 16):
            cZ += cmul(Z + 2*f, Z + 2*(f//2), Z + 2*(f - f//2), 1) + put(16 + f, Z + 2*f, 1)
        rowc = {1: 32, 2: 40, 3: 44, 4: 48, 5: 50, 6: 52, 7: 54, 8: 56}
        cC = put(32, ZC, 2)
        for c in range(2, 9):
            cC += cmul(ZC + 2*(c-1), ZC + 2*(c//2 - 1), ZC + 2*(c - c//2 - 1), 2) + put(rowc[c], ZC + 2*(c-1), 2)
        emit(interleave(cX, cZ, cC))
        prods = [(32 + j, 1, 2*j) for j in range(1, 8)] + [(rowc[c] + r, c, 4*r) for c in (2, 3) for r in range(1, 4)] + [(rowc[c] + 1, c, 8) for c in (4, 5, 6, 7)]
        chains = [[], [], [], []]
        for k, (row, c, f) in enumerate(prods):
            d = un + 6 + 2*(k % 4)
            chains[k % 4] += cmul(d, ZC + 2*(c-1), Z + 2*f, k % 4) + put(row, d, k % 4)
        emit(interleave(*chains))
        for s in range(4):
            a.ds(f"ds_read_b128 {vr(FR+16*s,4)}, v{vRdX} offset:{64*s}", ("k", s))
            a.ds(f"ds_read_b128 {vr(FR+16*s+4,4)}, v{vRdX} offset:{64*s+16*ROWB}", ("k", s))
            a.ds(f"ds_read_b128 {vr(FR+16*s+8,4)}, v{vRdX} offset:{64*s+32*ROWB}", ("k", s))
            a.ds(f"ds_read_b128 {vr(FR+16*s+12,4)}, v{vRdY2} offset:{64*s}", ("k", s))
        for s in range(4):
            a.wait(lg=("k", s))
            for t in range(3):
                a(f"v_mfma_f32_16x16x32_bf16 {vr(KA+4*t,4)}, {vr(FR+16*s+4+4*t,4)}, {vr(FR+16*s,4)}, {'0' if (ps == 0 and s == 0) else vr(KA+4*t,4)}")
    if wait_prep: wait_prep(a)
    UL = 192
    a(f"s_lshl_b32 s{sT}, s{sSig}, 14\ns_add_u32 s{sT}, s{sT}, {UT_OFF}\nv_lshlrev_b32 v17, 4, v0")
    for e in range(4):
        a.vm(f"buffer_load_dwordx4 {vr(UL+4*e,4)}, v17, {sr(dWs,4)}, s{sT} offen {SC1}", "u")
        if e < 3: a(f"s_add_u32 s{sT}, s{sT}, 4096")
    a(f"v_and_b32 v2, 15, v1\nv_lshrrev_b32 v3, 4, v1\ns_add_u32 s{sT}, s{sScr}, {KC_OFF}")
    a(f"v_lshlrev_b32 v10, 6, v2\nv_lshl_add_u32 v10, v3, 4, v10\nv_add_u32 v10, s{sT}, v10")
    a(f"v_lshlrev_b32 v11, 5, v2\nv_lshl_add_u32 v11, v3, 4, v11\nv_lshlrev_b32 v18, 4, v2\nv_lshl_add_u32 v18, v3, 8, v18\nv_cmp_gt_u32 vcc, 32, v1\ns_nop 1\nv_cndmask_b32 v11, v18, v11, vcc\nv_add_u32 v11, s{sT}, v11")
    a(f"v_lshlrev_b32 v18, 3, v2\nv_lshl_add_u32 v18, v3, 7, v18\nv_add_u32 v18, s{sT}, v18")
    a(f"v_lshlrev_b32 v19, 2, v1\nv_add_u32 v19, s{sT}, v19")
    a.ds(f"ds_write_b128 v10, {vr(KA,4)}", "w")
    a.ds(f"ds_write_b128 v11, {vr(KA+4,4)} offset:1024", "w")
    a.ds(f"ds_write_b64 v18, {vr(KA+8,2)} offset:2048", "w")
    a.ds(f"ds_write_b32 v19, v{KA+10} offset:2560", "w")
    E = 20
    a(f"v_lshlrev_b32 v10, 4, v1\nv_add_u32 v10, s{sT}, v10")
    a(f"v_lshlrev_b32 v11, 3, v1\nv_add_u32 v11, s{sT}, v11")
    a(f"v_lshrrev_b32 v18, 1, v1\nv_lshlrev_b32 v18, 2, v18\nv_add_u32 v18, s{sT}, v18\nv_add_u32 v18, 2048, v18")
    a(f"v_add_u32 v19, 1536, v19\nv_mov_b32 v2, s{sT}")
    a.ds(f"ds_read_b128 {vr(E,4)}, v10", "e0"); a.ds(f"ds_read_b32 v{E+4}, v10 offset:16", "e0"); a.ds(f"ds_read_b32 v{E+5}, v2", "e0")
    a.ds(f"ds_read_b64 {vr(E+6,2)}, v11 offset:1024", "e1"); a.ds(f"ds_read_b32 v{E+8}, v11 offset:1032", "e1")
    for w in (2, 3): a.ds(f"ds_read2_b32 {vr(E+10+2*(w-2),2)}, v19 offset0:{64*(w-2)} offset1:{64*(w-2)+1}", ("e", w))
    for w in range(4, 8): a.ds(f"ds_read2_b32 {vr(E+14+2*(w-4),2)}, v18 offset0:{32*(w-4)} offset1:{32*(w-4)+1}", ("e", w))
    vPw = 10
    a(f"v_lshlrev_b32 v{vPw}, 4, v1\nv_add_u32 v{vPw}, s{sScr}, v{vPw}")
    Q = 44
    cv = lambda d, x, y: a(f"v_cvt_pk_bf16_f32 v{d}, v{x}, v{y}")
    a.wait(lg="e0")
    for e in range(4): cv(Q+e, E+e, E+e+1)
    a.ds(f"ds_write_b128 v{vPw}, {vr(Q,4)} offset:{P_OFF+64}", "w")
    a(f"v_mov_b32 v{Q+32}, 0\nv_mov_b32 v{Q+33}, 0\nv_mov_b32 v{Q+34}, 0\nv_cvt_pk_bf16_f32 v{Q+35}, 0, v{E+5}\nv_cndmask_b32 v{Q+35}, 0, v{Q+35}, {sr(m3,2)}")
    a("s_mov_b64 exec, 0xf")
    a.ds(f"ds_write_b128 v{vPw}, {vr(Q+32,4)} offset:{P_OFF}", "w")
    a("s_mov_b64 exec, -1")
    a.wait(lg="e1")
    cv(Q+4, E+6, E+6); cv(Q+5, E+6, E+7); cv(Q+6, E+7, E+8); cv(Q+7, E+8, E+8)
    a.ds(f"ds_write_b128 v{vPw}, {vr(Q+4,4)} offset:{P_OFF+64+1024}", "w")
    for w in (2, 3):
        al = E+10+2*(w-2); be = al+1; q = Q+4*w
        a.wait(lg=("e", w))
        a(f"v_cndmask_b32 v2, v{al}, v{be}, {sr(mOdd,2)}")
        cv(q, al, al); cv(q+3, be, be); cv(q+1, al, 2); cv(q+2, 2, be)
        a.ds(f"ds_write_b128 v{vPw}, {vr(q,4)} offset:{P_OFF+64+1024*w}", "w")
    for w in range(4, 8):
        al = E+14+2*(w-4); be = al+1; q = Q+4*w
        a.wait(lg=("e", w))
        a(f"v_cndmask_b32 v2, v{al}, v{be}, {sr(m3,2)}\nv_cndmask_b32 v3, v{al}, v{be}, {sr(mOdd,2)}\nv_cndmask_b32 v11, v{al}, v{be}, {sr(mN0,2)}")
        cv(q, 2, 3); cv(q+1, 3, 3); cv(q+2, 3, 3); cv(q+3, 3, 11)
        a.ds(f"ds_write_b128 v{vPw}, {vr(q,4)} offset:{P_OFF+64+1024*w}", "w")
    a.wait(vm="u")
    for e in range(4): a.ds(f"ds_write_b128 v17, {vr(UL+4*e,4)} offset:{2048+4096*e}", "w")
    vA = 4
    vB = 12
    DK = 16
    a(f"v_and_b32 v2, 15, v1\nv_lshrrev_b32 v3, 4, v1\nv_lshlrev_b32 v20, 3, v3\nv_sub_u32 v20, v2, v20")
    a(f"v_lshlrev_b32 v21, 2, v20\nv_add_u32 v21, s{sScr}, v21")
    for aa in range(8): a(f"v_add_u32 v{vA+aa}, {P_OFF + 4*(25 + 256*aa)}, v21")
    a(f"v_lshl_add_u32 v22, v2, 1, v3")
    for m in range(4):
        a(f"v_add_u32 v23, {14 - 4*m}, v22\nv_lshrrev_b32 v24, 2, v23\nv_xor_b32 v24, s{sWave}, v24\nv_and_b32 v24, 3, v24\nv_lshlrev_b32 v24, 4, v24\nv_lshl_add_u32 v{vB+m}, v23, 6, v24")
    a(f"v_sub_u32 v21, -9, v20\nv_and_b32 v22, 1, v21\nv_lshlrev_b32 v22, 4, v22\nv_mov_b32 v23, s{sDsk}\nv_lshlrev_b32 v22, v22, v23\nv_ashrrev_i32 v21, 1, v21")
    for p in range(4): a(f"v_cmp_eq_u32 vcc, {p}, v21\ns_nop 1\nv_cndmask_b32 v{DK+p}, 0, v22, vcc")
    a.wait(lg="all")
    a("s_barrier")
    AC = 20
    FA = 52
    def rdA(rho, aa):
        d = FA + 64*(rho & 1) + 4*aa
        return [(f"ds_read2_b32 {vr(d,2)}, v{vA+aa} offset0:{32*rho} offset1:{32*rho+2}", ("c", rho, aa)),
                (f"ds_read2_b32 {vr(d+2,2)}, v{vA+aa} offset0:{32*rho+4} offset1:{32*rho+6}", ("c", rho, aa))]
    def rdB(rho, b):
        d = FA + 64*(rho & 1) + 32 + 4*b
        return [(f"ds_read_b128 {vr(d,4)}, v{vB+(rho&3)} offset:{2048*b + (1024 if rho < 4 else 0)}", ("c", rho, b))]
    def rds(rho):
        L = []
        for k in range(8): L += rdA(rho, k) + rdB(rho, k)
        return L
    for x in rds(0): a.ds(*x)
    first = [True]*8
    for rho in range(8):
        nxt = rds(rho + 1) if rho < 7 else []
        base = FA + 64*(rho & 1)
        ms = []
        for k in range(8):
            grp = [(aa, b) for aa in range(k+1) for b in range(k+1) if max(aa, b) == k and aa + b < 8]
            if rho == 0: grp.append((-1, k))
            ms.append(grp)
        cnt = 0
        for k in range(8):
            a.wait(lg=("c", rho, k))
            for aa, b in ms[k]:
                Tt = b if aa < 0 else aa + b
                A_ = vr(DK, 4) if aa < 0 else vr(base + 4*aa, 4)
                a(f"v_mfma_f32_16x16x32_bf16 {vr(AC+4*Tt,4)}, {A_}, {vr(base+32+4*b,4)}, {'0' if first[Tt] else vr(AC+4*Tt,4)}")
                first[Tt] = False
                cnt += 1
                if cnt > 4 and nxt and rho > 0 or (rho == 0 and k >= 3 and nxt): a.ds(*nxt.pop(0))
        for x in nxt: a.ds(*x)
    a(f"v_and_b32 v2, 15, v1\nv_lshrrev_b32 v3, 4, v1\nv_lshlrev_b32 v2, 5, v2\nv_lshl_add_u32 v2, v3, 3, v2\nv_add_u32 v2, s{sScr}, v2")
    a("s_nop 3")
    for Tt in range(8):
        d = FA + 2*Tt
        cv(d, AC+4*Tt, AC+4*Tt+1); cv(d+1, AC+4*Tt+2, AC+4*Tt+3)
        a.ds(f"ds_write_b64 v2, {vr(d,2)} offset:{Y_OFF + 512*Tt}", "w")
    a(f"v_lshlrev_b32 v3, 3, v0\nv_add_u32 v3, {U_BYTES + Y_OFF}, v3")
    a(f"v_lshrrev_b32 v4, 4, v0\nv_mul_u32_u24 v4, {160*512}, v4\nv_and_b32 v5, 15, v0\nv_lshl_add_u32 v4, v5, 5, v4")
    a(f"s_lshl_b32 s{sT}, s{sSig}, 9\ns_add_u32 s{sT}, s{sT}, {A_OFF}\ns_add_u32 s{sD}, s{sT}, {16*160*512}")
    a(f"s_mov_b32 s{mOdd}, 0x05040100\ns_mov_b32 s{mOdd+1}, 0x07060302")
    a.wait(lg="all")
    a("s_barrier")
    Y = 80
    for it in range(2):
        for c in range(4): a.ds(f"ds_read_b64 {vr(Y+8*it+2*c,2)}, v3 offset:{SCR*c + 2048*it}", ("y", it))
    for it in range(2):
        a.wait(lg=("y", it))
        y = Y + 8*it; o = Y + 16 + 8*it
        for tt in range(4):
            sel = mOdd + (tt & 1); h = tt >> 1
            a(f"v_perm_b32 v{o+2*tt}, v{y+2+h}, v{y+h}, s{sel}\nv_perm_b32 v{o+2*tt+1}, v{y+6+h}, v{y+4+h}, s{sel}")
        a.vm(f"buffer_store_dwordx4 {vr(o,4)}, v4, {sr(dWs,4)}, s{sD if it else sT} offen {SC1}", "a")
        a.vm(f"buffer_store_dwordx4 {vr(o+4,4)}, v4, {sr(dWs,4)}, s{sD if it else sT} offen offset:16 {SC1}", "a")

def gemm2(a, sTb, sDb):
    a.reset_q()
    srd(a, dW2, pW2, 1728*1280)
    srd(a, dOut, pOut, 2048*1280)
    sK, sWo, sHo, sM, sT, sN = 76, 77, 78, 79, 80, 81
    vD = 4
    vR, vHl = 9, 10
    ACC = 12
    WF = 92
    HF = 132
    EP = 196
    a(f"s_mul_i32 s{sK}, s{sWave}, 14\ns_cmp_eq_u32 s{sWave}, 3\ns_cselect_b32 s{sK}, 41, s{sK}")
    a(f"s_mul_i32 s{sT}, s{sDb}, 160")
    for e in range(5):
        a(f"v_add_u32 v2, {64*e}, v1\nv_mul_u32_u24 v3, 6554, v2\nv_lshrrev_b32 v3, 16, v3\nv_mul_u32_u24 v{vD+e}, 10, v3\nv_sub_u32 v2, v2, v{vD+e}")
        a(f"v_mul_u32_u24 v3, 1280, v3\nv_lshl_add_u32 v2, v2, 4, v3\nv_add_u32 v{vD+e}, s{sT}, v2")
        if 0 < e < 4: a(f"v_subrev_u32 v{vD+e}, {1024*e}, v{vD+e}")
    a(f"s_mul_i32 s{sWo}, s{sK}, {32*1280}\ns_mul_i32 s{sM}, s{sWave}, 20480")
    a(f"s_mul_i32 s{sHo}, s{sTb}, 54\ns_add_u32 s{sHo}, s{sHo}, s{sK}\ns_lshl_b32 s{sHo}, s{sHo}, 12")
    a(f"v_lshlrev_b32 v{vHl}, 4, v1")
    a(f"v_lshrrev_b32 v2, 5, v1\nv_lshlrev_b32 v2, 4, v2\nv_bfe_u32 v3, v1, 2, 3\nv_add_u32 v2, v2, v3\nv_mul_u32_u24 v2, 160, v2\nv_and_b32 v3, 3, v1\nv_lshl_add_u32 v2, v3, 3, v2\nv_add_u32 v{vR}, s{sM}, v2")
    NK = 14
    def issueW(k):
        slab = (k % 4) * 5120
        if k == 13: a(f"s_cmp_ge_u32 s{sWave}, 2\ns_cselect_b32 s{sWo}, 0, s{sWo}")
        a(f"s_add_u32 m0, s{sM}, {slab}\ns_nop 0")
        for e in range(4): a.vm(f"buffer_load_dwordx4 v{vD+e}, {sr(dW2,4)}, s{sWo} offen offset:{1024*e} lds", ("w", k))
        a(f"s_add_u32 m0, s{sM}, {slab+4096}\ns_nop 0")
        a.vm(f"buffer_load_dwordx4 v{vD+4}, {sr(dW2,4)}, s{sWo} offen lds", ("w", k))
        a(f"s_add_u32 s{sWo}, s{sWo}, {32*1280}")
    def issueH(k):
        if k == 13: a(f"s_cmp_ge_u32 s{sWave}, 2\ns_cselect_b32 s{sT}, 0x7f000000, 0\ns_cselect_b32 s{sHo}, 0, s{sHo}\nv_add_u32 v11, s{sT}, v{vHl}")
        for tt in range(4): a.vm(f"buffer_load_dwordx4 {vr(HF+16*(k%4)+4*tt,4)}, v{11 if k == 13 else vHl}, {sr(dWs,4)}, s{sHo} offen offset:{1024*tt} {SC1}", ("h", k))
        a(f"s_add_u32 s{sHo}, s{sHo}, 4096")
    def readW(k):
        slab = (k % 4) * 5120
        return [(f"ds_read_b64_tr_b16 {vr(WF+20*(k&1)+4*t+2*u,2)}, v{vR} offset:{slab + 1280*u + 32*t}", ("r", k)) for t in range(5) for u in range(2)]
    for k in range(4):
        issueW(k); issueH(k)
    a.wait(vm=("w", 0))
    for x in readW(0): a.ds(*x)
    for k in range(NK):
        nxt = []
        if k + 1 < NK:
            a.wait(vm=("w", k + 1))
            nxt = readW(k + 1)
        else: a.wait(vm=("h", k))
        a.wait(lg=("r", k))
        if k + 4 < NK: issueW(k + 4)
        n = 0
        for t in range(5):
            for tt in range(4):
                c = ACC + 4*(4*t + tt)
                a(f"v_mfma_f32_16x16x32_bf16 {vr(c,4)}, {vr(WF+20*(k&1)+4*t,4)}, {vr(HF+16*(k%4)+4*tt,4)}, {'0' if k == 0 else vr(c,4)}")
                if nxt: a.ds(*nxt.pop(0))
        if k + 4 < NK: issueH(k + 4)
    a(f"s_mul_i32 s{sT}, s{sTb}, 160\ns_mul_i32 s{sN}, s{sDb}, 20\ns_add_u32 s{sT}, s{sT}, s{sN}\ns_lshl_b32 s{sT}, s{sT}, 9\ns_lshl_b32 s{sN}, s{sWave}, 7\ns_add_u32 s{sT}, s{sT}, s{sN}\ns_add_u32 s{sT}, s{sT}, {A_OFF}")
    a(f"v_lshrrev_b32 v2, 4, v1\nv_lshlrev_b32 v2, 9, v2\nv_and_b32 v3, 15, v1\nv_lshl_add_u32 v2, v3, 3, v2")
    for t in range(5):
        a.vm(f"buffer_load_dwordx2 {vr(EP+2*t,2)}, v2, {sr(dWs,4)}, s{sT} offen offset:{2048*(t&1)} {SC1}", "ep")
        if t & 1: a(f"s_add_u32 s{sT}, s{sT}, 4096")
    a(f"s_lshl_b32 s{sT}, s{sTb}, 6\ns_lshl_b32 s{sN}, s{sWave}, 4\ns_add_u32 s{sK}, s{sT}, s{sN}\ns_lshl_b32 s{sT}, s{sK}, 2\ns_add_u32 s{sT}, s{sT}, {G_OFF}\nv_lshlrev_b32 v2, 2, v3")
    a.vm(f"buffer_load_dword v{EP+10}, v2, {sr(dWs,4)}, s{sT} offen {SC1}", "ep")
    a("s_barrier")
    a(f"s_mul_i32 s{sT}, s{sWave}, 5120\nv_add_u32 v4, s{sT}, v{vHl}\nv_add_u32 v5, s{sM}, v{vHl}")
    lbl = [a.label("L_red") for _ in range(4)]
    lend = a.label("L_redend")
    for w in range(4):
        if w < 3: a(f"s_cmp_lg_u32 s{sWave}, {w}\ns_cbranch_scc1 {lbl[w+1]}")
        for tt in range(4):
            if tt == w: continue
            for t in range(5):
                off = 20480*tt + 1024*t
                if off > 65535 - 15360:
                    pass
                a(f"ds_write_b128 v{4 if tt < 3 else 6}, {vr(ACC+4*(4*t+tt),4)} offset:{off if tt < 3 else 1024*t}") if not (tt == 3 and t == 0) else a(f"v_add_u32 v6, {20480*3}, v4\nds_write_b128 v6, {vr(ACC+4*3,4)}")
        for t in range(5):
            for e in range(4): a(f"v_mov_b32 v{HF+4*t+e}, v{ACC+4*(4*t+w)+e}")
        a(f"s_waitcnt lgkmcnt(0)\ns_barrier")
        srcs = [x for x in range(4) if x != w]
        for si, sw in enumerate(srcs):
            for t in range(5): a(f"ds_read_b128 {vr(ACC+20*si+4*t,4)}, v5 offset:{5120*sw + 1024*t}")
        if w < 3: a(f"s_branch {lend}\n{lbl[w+1]}:")
    a(f"{lend}:")
    a(f"v_and_b32 v3, 15, v1\nv_add_u32 v3, s{sK}, v3\nv_mul_u32_u24 v3, 1280, v3\nv_lshrrev_b32 v2, 4, v1\nv_lshl_add_u32 v3, v2, 3, v3\ns_mul_i32 s{sT}, s{sDb}, 160")
    a("s_waitcnt vmcnt(0)")
    a(f"v_sub_f32 v{EP+11}, 1.0, v{EP+10}\nv_cvt_pk_bf16_f32 v{EP+11}, v{EP+11}, v{EP+11}\nv_lshlrev_b32 v{EP+11}, 16, v{EP+11}")
    for si in range(3):
        a(f"s_waitcnt lgkmcnt({10 - 5*si})")
        for r in range(0, 20, 2): a(f"v_pk_add_f32 {vr(HF+r,2)}, {vr(HF+r,2)}, {vr(ACC+20*si+r,2)}")
    for t in range(5):
        x = EP + 12
        a(f"v_lshlrev_b32 v{x}, 16, v{EP+2*t}\nv_and_b32 v{x+1}, 0xffff0000, v{EP+2*t}\nv_lshlrev_b32 v{x+2}, 16, v{EP+2*t+1}\nv_and_b32 v{x+3}, 0xffff0000, v{EP+2*t+1}")
        for e in range(4): a(f"v_mul_f32 v{x+e}, v{EP+10}, v{x+e}")
        for e in range(4): a(f"v_fmac_f32 v{x+e}, v{EP+11}, v{HF+4*t+e}")
        a(f"v_cvt_pk_bf16_f32 v{EP+2*t}, v{x}, v{x+1}\nv_cvt_pk_bf16_f32 v{EP+2*t+1}, v{x+2}, v{x+3}")
        a(f"buffer_store_dwordx2 {vr(EP+2*t,2)}, v3, {sr(dOut,4)}, s{sT} offen offset:{32*t}")

def header_comment():
    return open("cdna_kernels/" + NAME + ".s.ref").read().split("; Override launch")[0]

def build3(fn):
    a = Asm()
    a(header_comment())
    a(f"; @launch kernel=p1_kernel grid=(256,1,1) block=(256,1,1) lds={LDS_BYTES}")
    a(f"; @launch kernel=p2_kernel grid=(160,1,1) block=(256,1,1) lds={LDS_BYTES}")
    a(f"; @launch kernel=p3_kernel grid=(256,1,1) block=(256,1,1) lds={LDS_BYTES}")
    a('.amdgcn_target "amdgcn-amd-amdhsa--gfx950"\n.text')
    a(kernel_header("p1_kernel"))
    stamp_begin(a)
    a("s_cmp_ge_u32 s2, 256\ns_cbranch_scc1 L_p1_end")
    prologue(a)
    a("s_cmp_lt_u32 s2, 32\ns_cbranch_scc1 L_prep")
    a("s_lshr_b32 s4, s2, 3\ns_sub_u32 s4, s4, 4\ns_and_b32 s5, s4, 3\ns_lshr_b32 s4, s4, 2")
    a("s_mul_i32 s8, s5, 5\ns_mul_i32 s9, s4, 3\ns_add_u32 s8, s8, s9\ns_sub_u32 s9, s8, 20\ns_cmp_ge_u32 s8, 20\ns_cselect_b32 s8, s9, s8")
    a("s_and_b32 s6, s2, 3\ns_lshl_b32 s6, s6, 2\ns_add_u32 s6, s6, s5")
    a("s_bfe_u32 s7, s2, 0x10002\ns_mul_i32 s7, s7, 7\ns_add_u32 s7, s7, s4")
    gemm1(a, 6, 7, 8)
    a("s_waitcnt vmcnt(0)")
    stamp_end(a, 0)
    a("s_endpgm\nL_prep:")
    prep(a, 2)
    a("s_waitcnt vmcnt(0)")
    stamp_end(a, 0)
    a("L_p1_end:\ns_endpgm")
    a(kernel_header("p2_kernel"))
    stamp_begin(a)
    a("s_cmp_ge_u32 s2, 160\ns_cbranch_scc1 L_p2_end")
    prologue(a)
    ssm(a, 2)
    a("s_waitcnt vmcnt(0)")
    stamp_end(a, 1)
    a("L_p2_end:\ns_endpgm")
    a(kernel_header("p3_kernel"))
    stamp_begin(a)
    a("s_cmp_ge_u32 s2, 256\ns_cbranch_scc1 L_p3_end")
    prologue(a)
    a("s_and_b32 s4, s2, 7\ns_lshl_b32 s4, s4, 2\ns_bfe_u32 s5, s2, 0x20003\ns_add_u32 s4, s4, s5\ns_lshr_b32 s5, s2, 5")
    gemm2(a, 4, 5)
    a("s_waitcnt vmcnt(0)")
    stamp_end(a, 2)
    a("L_p3_end:\ns_endpgm")
    a('.section .rodata,"a"')
    for k in ("p1_kernel", "p2_kernel", "p3_kernel"): a(kernel_desc(k, 256))
    errs = check_hazards(a.lines)
    for e in errs: print("HAZARD:", e)
    open(fn, "w").write(a.text())
    print(fn, len(a.lines), "lines;", len(errs), "hazards")

if __name__ == "__main__":
    STAMPS = "--stamps" in sys.argv
    build3(sys.argv[1])
```

```python
import sys
from asmlib import *
NAME = "gated_mix__ssm_conv_s4__dense_activation_relu__prompt"

H_OFF = 0
UT_OFF = 8 << 20
A_OFF = 12 << 20
G_OFF = 15 << 20
FL_OFF = (15 << 20) + (1 << 19)
FH, FR, FP, FA, FG = FL_OFF, FL_OFF + 0x10000, FL_OFF + 0x20000, FL_OFF + 0x30000, FL_OFF + 0x40000
ST_OFF = 16 << 20
W2P_OFF = 20 << 20
WS_SPAN = 32 << 20
LDS_BYTES = 163840
SB = 106496
NS = 160
GRID = 256
pU, pAre, pAim, pBre, pBim, pCre, pCim, pLdt, pDsk, pBx, pW1, pW2, pGw, pOut, pDbg, pWs = range(16, 48, 2)
dU, dW1, dW2, dWs, dOut, dTmp, dDbg = 48, 52, 56, 60, 64, 68, 72
sWave, sHalf, sN = 3, 92, 98
SC1 = "sc1"
FINE = False
vTS = 11
fine_n = [0]
OPT = dict(late=0, l2t=0, pbar=1, lsplit=384, g1rot=1, b2=8, rotb=3, x_s=0, x_l=0, x_nox=0, x_nog2=0, w_a=4, w_b=8, touch=0, cpf=1, slp=8, pL0=3, rot=1, alt=1, pG1=2, pS0=0, wrap=1, pS1=1, pG2=0,
           burst=8, afirst=1, s_pp=12, s_pc=15, s_pw=20, s_pn=9, l_w=0, l_a=4, g_fp=5, k_fr=0, k_ck=2, k_wr=7, wpf=1, frl=11, frc=14)

def ts(a, idx=None):
    if not FINE: return
    if idx is not None: fine_n[0] = idx
    a(f"s_memrealtime s[90:91]\ns_memtime s[88:89]\ns_waitcnt lgkmcnt(0)\nv_writelane_b32 v{vTS}, s90, {fine_n[0]}\nv_writelane_b32 v{vTS}, s88, {32+fine_n[0]}")
    a.lq.clear()
    fine_n[0] += 1
def ts_flush(a):
    if not FINE: return
    a(f"s_lshl_b32 s93, s{sHalf}, 8\ns_add_u32 s93, s93, s2\ns_lshl_b32 s93, s93, 2\ns_add_u32 s93, s93, s{sWave}\ns_lshl_b32 s93, s93, 8\ns_add_u32 s93, s93, {ST_OFF}\nv_lshlrev_b32 v2, 2, v1")
    a(f"buffer_store_dword v{vTS}, v2, {sr(dWs,4)}, s93 offen\ns_waitcnt vmcnt(0)")

def nonce_load(a, v, vz, tag="nonce"):
    a.vm(f"buffer_load_dwordx2 {vr(v,2)}, v{vz}, {sr(dDbg,4)}, 0 offen {SC1}", tag)
def nonce_get(a, v, vz, tag="nonce", sCnt=87):
    l = a.label("L_nl"); d = a.label("L_nd")
    a.wait(vm=tag)
    a(f"s_mov_b32 s{sCnt}, 0\n{l}:\nv_readfirstlane_b32 s{sN}, v{v}\nv_readfirstlane_b32 s{sN+1}, v{v+1}\ns_add_u32 s{sCnt}, s{sCnt}, 1")
    a(f"s_min_u32 s86, s{sN}, s{sN+1}\ns_cmp_lg_u32 s86, 0\ns_cbranch_scc1 {d}\ns_cmp_ge_u32 s{sCnt}, 0x8000\ns_cbranch_scc1 {d}")
    a(f"s_sleep 4\nbuffer_load_dwordx2 {vr(v,2)}, v{vz}, {sr(dDbg,4)}, 0 offen {SC1}\ns_waitcnt vmcnt(0)\ns_branch {l}\n{d}:")
def flag_load(a, v, vaddr, tag):
    a.vm(f"buffer_load_dwordx2 {vr(v,2)}, v{vaddr}, {sr(dWs,4)}, 0 offen {SC1}", tag)
def flag_check(a, v, vaddr, tag, sCnt=87, pre=None):
    l = a.label("L_fl"); d = a.label("L_fd")
    a.wait(vm=tag)
    if pre:
        a(f"v_cmp_eq_u64 vcc, {sr(sN,2)}, {vr(v,2)}\ns_nop 0\ns_cmp_eq_u64 vcc, -1\ns_cbranch_scc1 {d}")
        q = list(a.vq); pre(); a.vq = q
    a(f"s_mov_b32 s{sCnt}, 0\n{l}:\nv_cmp_eq_u64 vcc, {sr(sN,2)}, {vr(v,2)}\ns_add_u32 s{sCnt}, s{sCnt}, 1\ns_cmp_eq_u64 vcc, -1\ns_cbranch_scc1 {d}")
    a(f"s_cmp_ge_u32 s{sCnt}, 0x8000\ns_cbranch_scc1 {d}\ns_sleep {OPT['slp']}")
    a(f"buffer_load_dwordx2 {vr(v,2)}, v{vaddr}, {sr(dWs,4)}, 0 offen {SC1}\ns_waitcnt vmcnt(0)\ns_branch {l}\n{d}:")
def set_flag(a, sOff, vz, vn, tag=None):
    a("s_mov_b64 exec, 1")
    a.vm(f"buffer_store_dwordx2 {vr(vn,2)}, v{vz}, {sr(dWs,4)}, s{sOff} offen {SC1}", tag)
    a("s_mov_b64 exec, -1")

vNo, vFl, vZ, vHl, vFa = 4, 6, 8, 9, 10
sTb, sDb, sK, sRb, sCg, sHf = 4, 5, 6, 7, 8, 9

def g_common(a):
    a(f"s_and_b32 s{sTb}, s2, 7\ns_lshl_b32 s{sTb}, s{sTb}, 2\ns_bfe_u32 s{sDb}, s2, 0x20003\ns_add_u32 s{sTb}, s{sTb}, s{sDb}\ns_lshr_b32 s{sDb}, s2, 5")
    a(f"s_mul_i32 s{sK}, s{sWave}, 14\ns_cmp_eq_u32 s{sWave}, 3\ns_cselect_b32 s{sK}, 41, s{sK}")
    a(f"v_mov_b32 v{vZ}, 0\nv_lshlrev_b32 v{vHl}, 4, v1")
    a(f"s_cmp_ge_u32 s{sWave}, 2\ns_cselect_b32 s10, 12, 13\nv_and_b32 v2, 31, v1\nv_min_u32 v2, s10, v2\nv_add_u32 v2, s{sK}, v2")
    a(f"s_mul_i32 s10, s{sDb}, 5\ns_lshr_b32 s10, s10, 2\nv_lshrrev_b32 v3, 5, v1\nv_add_u32 v3, s10, v3\nv_lshlrev_b32 v3, 12, v3\nv_lshl_add_u32 v{vFa}, v2, 6, v3\nv_add_u32 v{vFa}, {FR}, v{vFa}")

vX = [12, 13, 14, 15]; vW = [16, 17]; vRX = [18, 19, 20, 21]; vRW = [22, 23]
sX, sW, sMx, sMw, sT1 = 76, 77, 78, 79, 80
WB = 0; XB = 40960; NXS = 4; NWS = 5
FLG = 159744
BURST_REST = []; SLOW = []; PFW_LEFT = []
sFrOk = 14
vSy, vSa, vSv, vSf = 0, 152, 153, 2
WF = 156; HF = 92
sK0 = 101
def dmaX(c, e):
    pre = ""
    if e % 2 == 0: pre = f"s_add_u32 m0, s{sMx}, {(c%NXS)*16384}"
    if e == 0 and c > 0: pre += f"\ns_add_u32 s{sX}, s{sX}, 128\ns_cmp_eq_u32 s{sX}, 1280\ns_cselect_b32 s{sX}, 0, s{sX}"
    elif e % 2 == 0: pre += "\ns_nop 0"
    return [pre, (f"buffer_load_dwordx4 v{vX[e]}, {sr(dU,4)}, s{sX} offen offset:{1024*e} lds", ("x", c))]
def dmaW(i, e):
    pre = ""
    if e == 0:
        pre = f"s_add_u32 m0, s{sMw}, {(i%NWS)*8192}"
        pre += f"\ns_add_u32 s{sW}, s{sW}, {32*3456}\ns_cmp_eq_u32 s{sW}, {640*3456}\ns_cselect_b32 s{sW}, 0, s{sW}" if i > 0 else "\ns_nop 0"
    return [pre, (f"buffer_load_dwordx4 v{vW[e]}, {sr(dW1,4)}, s{sW} offen offset:{1024*e} lds", ("w", i))]
def gemm1_addr(a):
    sT = sT1; vH = 6
    if OPT["g1rot"]:
        a(f"s_lshl_b32 s{sK0}, s10, 1\ns_bfe_u32 s{sT}, s2, 0x10002\ns_add_u32 s{sK0}, s{sK0}, s{sT}\ns_cmp_ge_u32 s10, 5\ns_cselect_b32 s{sT}, 3, 0\ns_add_u32 s{sK0}, s{sK0}, s{sT}")
        a(f"s_mul_i32 s{sT}, s11, 5\ns_add_u32 s{sT}, s{sT}, 1\ns_lshr_b32 s{sT}, s{sT}, 1\ns_add_u32 s{sK0}, s{sK0}, s{sT}")
        for _ in range(2): a(f"s_cmp_ge_u32 s{sK0}, 10\ns_cselect_b32 s{sT}, 10, 0\ns_sub_u32 s{sK0}, s{sK0}, s{sT}")
    else: a(f"s_mov_b32 s{sK0}, 0")
    a(f"s_lshl_b32 s{sT}, s{sRb}, 7\ns_lshl_b32 s{sMx}, s{sWave}, 5\ns_add_u32 s{sT}, s{sT}, s{sMx}")
    a(f"v_lshrrev_b32 v2, 3, v1\nv_add_u32 v2, s{sT}, v2\nv_mul_u32_u24 v2, 1280, v2")
    a(f"v_lshrrev_b32 v3, 4, v1\nv_xor_b32 v{vH}, v3, v1\nv_and_b32 v{vH}, 7, v{vH}\nv_lshl_add_u32 v{vX[0]}, v{vH}, 4, v2")
    a(f"s_lshl_b32 s{sMx}, s{sWave}, 12\ns_add_u32 s{sMx}, s{sMx}, {XB}")
    a(f"v_xor_b32 v{vX[1]}, 64, v{vX[0]}\nv_add_u32 v{vX[1]}, {8*1280-1024}, v{vX[1]}\nv_add_u32 v{vX[2]}, {16*1280-2048}, v{vX[0]}\nv_add_u32 v{vX[3]}, {16*1280-2048}, v{vX[1]}")
    a(f"s_lshl_b32 s{sT}, s{sWave}, 3\nv_add_u32 v2, s{sT}, v3\nv_mul_u32_u24 v2, 3456, v2\ns_lshl_b32 s{sMw}, s{sCg}, 8\nv_add_u32 v2, s{sMw}, v2")
    a(f"v_lshlrev_b32 v{vW[0]}, 2, v3\nv_xor_b32 v{vW[0]}, v{vW[0]}, v1\nv_and_b32 v{vW[0]}, 15, v{vW[0]}\nv_lshl_add_u32 v{vW[0]}, v{vW[0]}, 4, v2")
    a(f"v_add_u32 v{vW[1]}, {4*3456-1024}, v{vW[0]}")
    a(f"s_lshl_b32 s{sMw}, s{sWave}, 11\ns_add_u32 s{sMw}, s{sMw}, {WB}")
def gemm1_head(a):
    a.reset_q()
    sT = sT1; vH = 6
    def em(L):
        a(L[0]); a.vm(*L[1])
    srd(a, dW1, pW1, 640*3456)
    a(f"s_lshl_b32 s{sX}, s{sK0}, 7\ns_mul_i32 s{sW}, s{sK0}, {64*3456}")
    def addr2():
        g_common(a)
        a(f"s_lshr_b32 s{sT}, s{sWave}, 1\ns_lshl_b32 s{sT}, s{sT}, 13\ns_add_u32 s{sT}, s{sT}, {XB}")
        a(f"v_and_b32 v2, 31, v1\nv_lshlrev_b32 v2, 7, v2\nv_add_u32 v2, s{sT}, v2")
        a(f"v_lshrrev_b32 v3, 5, v1\nv_bfe_u32 v{vH}, v1, 1, 3\nv_xor_b32 v3, v3, v{vH}\nv_lshl_add_u32 v{vRX[0]}, v3, 4, v2")
        for p in range(1, 4): a(f"v_xor_b32 v{vRX[p]}, {32*p}, v{vRX[0]}")
        a(f"v_bfe_u32 v{vH}, v1, 2, 2\nv_lshrrev_b32 v2, 5, v1\nv_lshlrev_b32 v2, 11, v2\nv_lshl_add_u32 v2, v{vH}, 8, v2")
        a(f"s_and_b32 s{sT}, s{sWave}, 1\ns_lshl_b32 s{sT}, s{sT}, 1\nv_xor_b32 v3, s{sT}, v{vH}\nv_lshl_add_u32 v2, v3, 6, v2")
        a(f"v_bfe_u32 v3, v1, 4, 1\nv_lshl_add_u32 v2, v3, 5, v2\nv_and_b32 v3, 3, v1\nv_lshl_add_u32 v2, v3, 3, v2")
        a(f"v_add_u32 v{vRW[0]}, {WB}, v2\nv_xor_b32 v{vRW[1]}, 64, v{vRW[0]}")
    if OPT["afirst"]: addr2()
    if OPT["late"]: a("s_waitcnt vmcnt(0)")
    rest = [dmaX(0, e) for e in range(4)] + [dmaW(0, 0), dmaW(0, 1), dmaW(1, 0), dmaW(1, 1)] + [dmaW(2, 0), dmaW(2, 1), dmaW(3, 0), dmaW(3, 1)] + [dmaX(1, e) for e in range(4)] + [dmaW(4, 0), dmaW(4, 1)] + [dmaX(2, e) for e in range(4)]
    for x in rest[:OPT["burst"]]: em(x)
    BURST_REST[:] = rest[OPT["burst"]:]
    if not OPT["afirst"]: addr2()
def gemm1_loop(a):
    sT = sT1; F = 24; ACC = 88
    def em(L):
        a(L[0]); a.vm(*L[1])
    def reads(i):
        O = []
        for p in range(2):
            b = F + 32*(i & 1) + 16*p; L = []
            for bf in range(2):
                for u in range(2):
                    L.append(f"ds_read_b64_tr_b16 {vr(b+4*bf+2*u,2)}, v{vRW[bf]} offset:{(i%NWS)*8192 + 4096*p + 1024*u}")
            for bt in range(2):
                L.append(f"ds_read_b128 {vr(b+8+4*bt,4)}, v{vRX[2*(i&1)+p]} offset:{((i>>1)%NXS)*16384 + 4096*bt}")
            O += [L[0], L[1], L[4], L[2], L[3], L[5]]
        return O
    def mfmas(i):
        L = []
        order = [(p, bf, bt) for p in range(2) for bf, bt in ((0,0),(1,0),(0,1),(1,1))]
        if i == 19: order = [(p, bf, bt) for bf, bt in ((0,0),(1,0),(0,1),(1,1)) for p in range(2)]
        for p, bf, bt in order:
            b = F + 32*(i & 1) + 16*p
            c = ACC + 16*(2*bf+bt)
            L.append(f"v_mfma_f32_32x32x16_bf16 {vr(c,16)}, {vr(b+4*bf,4)}, {vr(b+8+4*bt,4)}, {'0' if (i == 0 and p == 0) else vr(c,16)}")
        return L
    def stage_tag(i):
        tags = [("w", i), ("x", i >> 1)]
        idx = [max((k for k, t in enumerate(a.vq) if t == tg), default=-1) for tg in tags]
        return tags[0] if idx[0] >= idx[1] else tags[1]
    PFW = []; CARRY = []
    for i in range(21):
        a.wait(vm=stage_tag(i) if i < 20 else None, lg="all")
        a("s_barrier")
        if i in (0, 4, 10, 16): ts(a)
        D = []
        if i >= 1 and i + 4 < 20: D += [dmaW(i + 4, 0), dmaW(i + 4, 1)]
        c = (i >> 1) + 3
        if c < 10: D += [dmaX(c, 2*(i & 1)), dmaX(c, 2*(i & 1) + 1)]
        if BURST_REST or CARRY:
            D = CARRY + BURST_REST + D; del BURST_REST[:]
            CARRY = D[6:]; D = D[:6]
        dpos = (1, 3, 5, 6) if len(D) <= 4 else (0, 1, 3, 4, 5, 6)
        R = reads(i) if i < 20 else []
        M = mfmas(i - 1) if i > 0 else []
        if i == OPT["frc"] + 1 and OPT["wpf"]: PFW = g2_wprefetch()
        for k in range(8):
            if M: a(M[k])
            for _ in range(3):
                if R: a.ds(R.pop(0), ("f", i))
            if k in dpos and D: em(D.pop(0))
            elif k in (1, 3, 4, 5, 6) and PFW and not D:
                x = PFW.pop(0)
                if x[0]: a(x[0])
                a.vm(x[1], x[2])
            if k == 7 and i == 0: nonce_load(a, vNo, vZ)
            if k == 4 and i == OPT["g_fp"]:
                nonce_get(a, vNo, vZ)
                lf = a.label("L_nfp")
                a(f"s_cmp_ge_u32 s2, {NS}\ns_cbranch_scc1 {lf}")
                q = list(a.vq); set_flag(a, sFp, vZ, vNo); a.vq = q
                a(f"{lf}:")
            if k == 7 and i == OPT["frl"]: flag_load(a, vFl, vFa, "fr")
            if k == 4 and i == OPT["frc"]:
                a.wait(vm="fr")
                a(f"v_cmp_eq_u64 vcc, {sr(sN,2)}, {vr(vFl,2)}\ns_nop 0\ns_cmp_eq_u64 vcc, -1\ns_cselect_b32 s{sFrOk}, 1, 0")
            if k == 2 and i == OPT["frc"]: g2_setup(a)
        assert not R and not D
    PFW_LEFT[:] = PFW
    ts(a)
    a("s_setprio 3")
    vH = 12
    lskip = a.label("L_g1skip"); lgo = a.label("L_g1go")
    a(f"s_and_b32 s{sT}, s{sWave}, 1\ns_lshl_b32 s{sX}, s{sCg}, 1\ns_add_u32 s{sT}, s{sT}, s{sX}")
    a(f"s_lshr_b32 s{sX}, s{sWave}, 1\ns_lshl_b32 s{sW}, s{sRb}, 1\ns_add_u32 s{sX}, s{sX}, s{sW}")
    a(f"s_lshl_b32 s{sHf}, s{sX}, 5\ns_add_u32 s{sHf}, s{sHf}, s{sT}\ns_lshl_b32 s{sHf}, s{sHf}, 6\ns_add_u32 s{sHf}, s{sHf}, {FH}")
    a(f"s_cmp_lt_u32 s{sT}, 27\ns_cbranch_scc0 {lskip}")
    a(f"s_mul_i32 s{sX}, s{sX}, 27\ns_add_u32 s{sX}, s{sX}, s{sT}\ns_lshl_b32 s{sX}, s{sX}, 13\ns_add_u32 s{sW}, s{sX}, 4096")
    a(f"v_bfe_u32 v2, v1, 4, 1\nv_lshlrev_b32 v2, 10, v2\nv_lshrrev_b32 v3, 5, v1\nv_lshl_add_u32 v2, v3, 8, v2\nv_and_b32 v3, 15, v1\nv_lshl_add_u32 v{vH}, v3, 4, v2")
    n = 0
    for bf, bt in ((0,0),(1,0),(0,1),(1,1)):
        c = ACC + 16*(2*bf+bt)
        for half in range(2):
            d = F + 4*n; n += 1
            for e in range(4): a(f"v_cvt_pk_bf16_f32 v{d+e}, v{c+8*half+2*e}, v{c+8*half+2*e+1}")
            for e in range(4): a(f"v_pk_max_i16 v{d+e}, v{d+e}, 0")
            a.vm(f"buffer_store_dwordx4 {vr(d,4)}, v{vH}, {sr(dWs,4)}, s{sW if bf else sX} offen offset:{2048*bt + 512*half} {SC1}", "hst")
    a(f"{lskip}:")

def unit_split(a, sUn, sUk, sUc):
    a(f"s_mul_i32 s{sUk}, s{sUn}, 6554\ns_lshr_b32 s{sUk}, s{sUk}, 16\ns_mul_i32 s{sUc}, s{sUk}, 10\ns_sub_u32 s{sUc}, s{sUn}, s{sUc}")
def unit_dma(a, srd_, sUk, sUc, sL, loff, vOff, tag, sT=10, sT2=11):
    a(f"s_mul_i32 s{sT}, s{sUk}, {32*1280}\ns_lshl_b32 s{sT2}, s{sUc}, 7\ns_add_u32 s{sT}, s{sT}, s{sT2}")
    for e in range(4):
        a(f"s_add_u32 m0, s{sL}, {loff + 1024*e}")
        a(f"s_add_u32 s{sT2}, s{sT}, {8*1280*e}")
        a.vm(f"buffer_load_dwordx4 v{vOff}, {sr(srd_,4)}, s{sT2} offen lds", tag)
def unit_voff(a, v):
    a(f"v_lshrrev_b32 v{v}, 3, v1\nv_mul_u32_u24 v{v}, 1280, v{v}\nv_and_b32 v3, 7, v1\nv_lshl_add_u32 v{v}, v3, 4, v{v}")

def ptouch(a):
    a(f"v_mov_b32 v{vZ}, 0\ns_sub_u32 s79, s2, 224\ns_lshl_b32 s10, s79, 2\ns_add_u32 s10, s10, s{sWave}")
    a(f"s_cmp_lg_u32 s10, 0\ns_cbranch_scc1 L_nonn")
    a(f"s_memrealtime {sr(sN,2)}\ns_waitcnt lgkmcnt(0)\ns_or_b32 s12, s{sN}, 1\ns_or_b32 s13, s{sN+1}, 0x80000000\nv_mov_b32 v{vNo}, s12\nv_mov_b32 v{vNo+1}, s13")
    a(f"s_mov_b64 exec, 1\nbuffer_store_dwordx2 {vr(vNo,2)}, v{vZ}, {sr(dDbg,4)}, 0 offen {SC1}\ns_mov_b64 exec, -1")
    a("L_nonn:")
    if OPT["pbar"]: a("s_barrier")
    if OPT["touch"]:
        for rnd in range(2):
            a(f"s_add_u32 s11, s10, {27+128*rnd}\ns_min_u32 s11, s11, 269\ns_lshl_b32 s11, s11, 13\nv_lshl_add_u32 v12, v1, 7, s11\nglobal_load_dword v13, v12, {sr(pW1,2)}")
def loader(a):
    a.reset_q()
    if OPT["x_l"] == 2: return
    a(f"s_setprio {OPT['pL0']}")
    srd(a, dW2, pW2, 1728*1280)
    sUn, sL = 5, 12
    K = [6, 8]; C = [7, 9]
    a(f"s_sub_u32 s{sUn}, s2, {NS}\ns_lshl_b32 s{sUn}, s{sUn}, 2\ns_add_u32 s{sUn}, s{sUn}, s{sWave}\ns_lshl_b32 s{sL}, s{sWave}, 13\ns_add_u32 s{sL}, s{sL}, {SB}")
    unit_voff(a, 2)
    if OPT["lsplit"] == 256:
        a(f"s_cmp_ge_u32 s{sUn}, 284\ns_cbranch_scc1 L_ldx")
    unit_split(a, sUn, K[0], C[0])
    unit_dma(a, dW2, K[0], C[0], sL, 0, 2, "a")
    a(f"s_add_u32 s{sUn}, s{sUn}, 156\ns_cmp_lt_u32 s{sUn}, 384\ns_cselect_b32 s{sUn}, 600, s{sUn}")
    unit_split(a, sUn, K[1], C[1])
    a(f"s_cmp_ge_u32 s{sUn}, 540\ns_cbranch_scc1 L_ld1")
    unit_dma(a, dW2, K[1], C[1], sL, 4096, 2, "b")
    a("L_ld1:")
    a(f"v_mov_b32 v{vZ}, 0\nv_lshlrev_b32 v{vHl}, 4, v1")
    a(f"v_lshrrev_b32 v2, 5, v1\nv_lshlrev_b32 v2, 4, v2\nv_bfe_u32 v3, v1, 2, 3\nv_add_u32 v2, v2, v3")
    a(f"v_lshlrev_b32 v2, 7, v2\nv_and_b32 v3, 3, v1\nv_lshl_add_u32 v2, v3, 3, v2\nv_add_u32 v12, s{sL}, v2")
    a(f"s_cmp_ge_u32 s{sUn}, 540\ns_cselect_b32 s10, 0x7f000000, 0\nv_add_u32 v13, s10, v{vHl}\ns_cselect_b32 s{K[1]}, 63, s{K[1]}\ns_cselect_b32 s{C[1]}, 0, s{C[1]}")
    def bar(n=1):
        l = a.label("L_lb")
        a(f"s_cmp_ge_u32 s2, 224\ns_cbranch_scc1 {l}")
        for _ in range(n): a("s_barrier")
        a(f"{l}:")
    if OPT["x_l"] == 1:
        bar(21); return
    n0 = len(a.lines)
    if OPT["l_w"]: bar(OPT["l_w"])
    a("s_waitcnt vmcnt(0)")
    ts(a)
    for n in range(2):
        for t in range(4):
            for u in range(2): a.ds(f"ds_read_b64_tr_b16 {vr(16+16*n+4*t+2*u,2)}, v12 offset:{4096*n + 1024*u + 32*t}", ("rl", n))
    for n in range(2):
        for t in range(4):
            a(f"s_lshl_b32 s14, s{C[n]}, 2\ns_add_u32 s14, s14, {t}\ns_mul_i32 s15, s14, 205\ns_lshr_b32 s15, s15, 10\ns_mul_i32 s15, s15, {54*5-5}\ns_add_u32 s14, s14, s15\ns_mul_i32 s15, s{K[n]}, 5\ns_add_u32 s14, s14, s15\ns_lshl_b32 s14, s14, 10\ns_add_u32 s14, s14, {W2P_OFF}")
            a.wait(lg=("rl", n))
            a(f"buffer_store_dwordx4 {vr(16+16*n+4*t,4)}, v{13 if n else vHl}, {sr(dWs,4)}, s14 offen {SC1}")
    nonce_load(a, vNo, vZ)
    if OPT["pbar"]: a("s_cmp_lt_u32 s2, 224\ns_cbranch_scc1 L_ldp\ns_barrier\nL_ldp:")
    ts(a)
    bar(OPT["l_a"])
    a("s_waitcnt vmcnt(0)")
    nonce_get(a, vNo, vZ, tag="none")
    for n in range(2):
        if n: a(f"s_cmp_ge_u32 s{sUn}, 540\ns_cbranch_scc1 L_ld3")
        a(f"s_lshl_b32 s14, s{C[n]}, 6\ns_add_u32 s14, s14, s{K[n]}\ns_lshl_b32 s14, s14, 6\ns_add_u32 s14, s14, {FR}")
        set_flag(a, 14, vZ, vNo)
    a("L_ld3:")
    if OPT["wrap"]: a.lines[n0:] = wrap_prio(a.lines[n0:], 0)
    ts(a)
    bar(21 - OPT["l_w"] - OPT["l_a"])
def pgate(a):
    a.reset_q()
    sT, sM, sO, sP = 76, 77, 78, 79
    ts(a)
    g_common(a)
    srd(a, dTmp, pGw, 1280)
    vD = 14; vG = 26; vS = 30
    GW = 32; XF = 112; ACC = 224
    a(f"s_and_b32 s{sT}, s{sP}, 3\ns_lshl_b32 s{sT}, s{sT}, 3\ns_lshr_b32 s{sM}, s{sP}, 2\ns_add_u32 s{sT}, s{sT}, s{sM}")
    a(f"s_lshl_b32 s{sT}, s{sT}, 6\ns_lshl_b32 s{sM}, s{sWave}, 4\ns_add_u32 s{sT}, s{sT}, s{sM}\ns_mul_i32 s{sO}, s{sT}, 1280")
    for b in range(5):
        r0 = (64*b) // 80; lim = (r0 + 1) * 80 - 64*b
        a(f"v_cmp_le_u32 vcc, {lim}, v1\nv_mov_b32 v2, {r0}\nv_mov_b32 v3, {r0+1}\nv_cndmask_b32 v2, v2, v3, vcc" if lim < 64 else f"v_mov_b32 v2, {r0}")
        a(f"v_mul_u32_u24 v3, 80, v2\nv_sub_u32 v3, v1, v3\nv_add_u32 v3, {64*b}, v3")
        a(f"v_lshlrev_b32 v{vS}, 1, v2\nv_xor_b32 v3, v3, v{vS}\nv_mul_u32_u24 v2, 1280, v2\nv_lshl_add_u32 v{vD+b}, v3, 4, v2")
        a(f"v_xor_b32 v3, 8, v3\nv_lshl_add_u32 v{vD+5+b}, v3, 4, v2")
    a(f"s_mul_i32 s{sM}, s{sWave}, 20480")
    a(f"v_and_b32 v2, 15, v1\nv_mul_u32_u24 v{vS}, 1280, v2\nv_add_u32 v{vS}, s{sM}, v{vS}")
    a(f"v_and_b32 v2, 3, v1\nv_bfe_u32 v3, v1, 3, 1\nv_lshl_add_u32 v2, v3, 2, v2\nv_lshlrev_b32 v2, 1, v2\nv_lshrrev_b32 v3, 4, v1\nv_xor_b32 v2, v2, v3\nv_lshlrev_b32 v2, 4, v2")
    for m in range(4): a(f"v_xor_b32 v3, {64*m}, v2\nv_add_u32 v{vG+m}, v3, v{vS}")
    a("s_waitcnt vmcnt(0)")
    ts(a)
    for aa in range(4):
        for b in range(5):
            a(f"s_add_u32 m0, s{sM}, {(5*aa+b)*1024}\ns_nop 0")
            a.vm(f"buffer_load_dwordx4 v{vD+5*(aa>>1)+b}, {sr(dU,4)}, s{sO} offen lds", "x")
        if aa < 3: a(f"s_add_u32 s{sO}, s{sO}, 5120")
    a(f"v_lshrrev_b32 v2, 4, v1\nv_lshlrev_b32 v2, 4, v2")
    for s in range(20): a.vm(f"buffer_load_dwordx4 {vr(GW+4*s,4)}, v2, {sr(dTmp,4)}, 0 offen offset:{64*s}", "gw")
    nonce_load(a, vNo, vZ)
    a.wait(vm="x")
    ts(a)
    for s in range(20): a.ds(f"ds_read_b128 {vr(XF+4*s,4)}, v{vG+(s&3)} offset:{256*(s>>2)}", ("g", s))
    a.wait(vm="gw")
    for s in range(20):
        a.wait(lg=("g", s))
        a(f"v_mfma_f32_16x16x32_bf16 {vr(ACC,4)}, {vr(GW+4*s,4)}, {vr(XF+4*s,4)}, {'0' if s == 0 else vr(ACC,4)}")
    a("s_nop 7")
    a(f"v_cvt_pk_bf16_f32 v2, v{ACC}, v{ACC}\nv_lshlrev_b32 v2, 16, v2\nv_mul_f32 v2, 0xbfb8aa3b, v2\nv_exp_f32 v2, v2\ns_nop 0\nv_add_f32 v2, 1.0, v2\nv_rcp_f32 v2, v2\ns_nop 0")
    a(f"v_cvt_pk_bf16_f32 v2, v2, v2\nv_lshlrev_b32 v2, 16, v2")
    a(f"s_lshl_b32 s{sO}, s{sT}, 2\ns_add_u32 s{sHf}, s{sO}, {FG}\ns_add_u32 s{sO}, s{sO}, {G_OFF}\nv_lshlrev_b32 v3, 2, v1")
    flag_load(a, vFl, vFa, "fr")
    nonce_get(a, vNo, vZ)
    g2_setup(a)
    a(f"s_mov_b32 s{sFrOk}, 0\ns_waitcnt vmcnt(0)\ns_mov_b64 exec, 0xffff")
    a(f"buffer_store_dword v2, v3, {sr(dWs,4)}, s{sO} offen {SC1}")
    a("s_mov_b64 exec, -1")
    ts(a)

ROWB = 272; SCR = 32*ROWB
KS = 90112; U_A = 106496; KC_A = U_A + 2048; PB = KS + 4*SCR
XR = 220
sD, sDt, sDsk, sScr, sSh = 81, 82, 83, 84, 85
PR = 24; KA = 124
def kgen_loads(a):
    a(f"s_lshl_b32 s{sD}, s2, 2\ns_add_u32 s{sD}, s{sD}, s{sWave}\ns_lshl_b32 s10, s{sD}, 8\nv_lshl_add_u32 v2, v1, 2, s10")
    for k, p in enumerate((pAre, pAim, pBre, pBim, pCre, pCim)):
        a(f"global_load_dword v{PR+k}, v2, {sr(p,2)}")
    a(f"s_lshr_b32 s10, s{sD}, 1\ns_lshl_b32 s10, s10, 2")
    a(f"s_load_dword s{sDt}, {sr(pLdt,2)}, s10\ns_load_dword s{sDsk}, {sr(pDsk,2)}, s10")
def kgen(a, nyoung):
    vWr, vRdX, vRdY2, vDt, WA = 30, 31, 32, 33, 34
    Z = 44; ZC = 76; Z16 = 92; X = 94; O = 98; T = 114; FRG = 136; un = 200
    lq0 = a.lq; a.lq = []
    a(f"s_xor_b32 s10, s{sHalf}, 1\ns_lshl_b32 s10, s10, 2\ns_add_u32 s10, s10, s{sWave}\ns_mul_i32 s{sScr}, s10, {SCR}\ns_add_u32 s{sScr}, s{sScr}, {KS}\ns_lshl_b32 s{sSh}, s{sHalf}, 4")
    a(f"v_lshl_add_u32 v{vWr}, v1, 2, s{sScr}")
    for m in range(8): a(f"v_add_u32 v{WA+m}, {4*ROWB*m}, v{vWr}")
    a(f"v_and_b32 v2, 15, v1\nv_lshrrev_b32 v3, 4, v1\nv_lshl_add_u32 v3, v3, 4, s{sScr}")
    a(f"v_mul_u32_u24 v{vRdX}, {ROWB}, v2\nv_add_u32 v{vRdX}, v{vRdX}, v3")
    a(f"v_lshrrev_b32 v42, 2, v2\nv_and_b32 v43, 1, v2\nv_lshl_add_u32 v42, v42, 1, v43\nv_add_u32 v42, 16, v42\nv_and_b32 v43, 2, v2\nv_cmp_eq_u32 vcc, 0, v43\nv_mov_b32 v43, 24\ns_nop 0\nv_cndmask_b32 v42, v43, v42, vcc")
    a(f"v_mul_u32_u24 v{vRdY2}, {ROWB}, v42\nv_add_u32 v{vRdY2}, v{vRdY2}, v3")
    a("s_waitcnt lgkmcnt(0)")
    a(f"s_bitcmp1_b32 s{sD}, 0\ns_cselect_b32 s10, 0, 16\ns_lshl_b32 s{sDt}, s{sDt}, s10\ns_and_b32 s{sDt}, s{sDt}, 0xffff0000\ns_lshl_b32 s{sDsk}, s{sDsk}, s10\ns_lshr_b32 s{sDsk}, s{sDsk}, 16")
    a(f"v_mov_b32 v2, s{sDt}\nv_mul_f32 v3, 0x3fb8aa3b, v2\ns_mov_b32 s10, 0x3fb8aa3b\nv_fma_f32 v42, v2, s10, -v3\nv_fmac_f32 v42, 0x32a57060, v2")
    a(f"v_exp_f32 v3, v3\nv_mul_f32 v42, 0x3f317218, v42\nv_fma_f32 v3, v3, v42, v3\nv_cvt_pk_bf16_f32 v3, v3, v3\nv_lshlrev_b32 v{vDt}, 16, v3")
    if not OPT["late"]: a(f"s_cmp_eq_u32 s{sHalf}, 0\ns_cbranch_scc1 L_kw\ns_waitcnt vmcnt({min(2, OPT['l2t'])})\nL_kw:\ns_waitcnt vmcnt({nyoung})")
    ts(a, 20)
    def cmul(D, A_, B_):
        return [f"v_pk_mul_f32 {vr(D,2)}, {vr(A_,2)}, {vr(B_,2)} op_sel:[0,0] op_sel_hi:[1,0]",
                f"v_pk_fma_f32 {vr(D,2)}, {vr(A_,2)}, {vr(B_,2)}, {vr(D,2)} op_sel:[1,1,0] op_sel_hi:[0,1,1] neg_lo:[0,1,0]"]
    class Ch:
        def __init__(s_, ch): s_.ch = ch; s_.n = 0; s_.pend = None; s_.L = []
        def mul(s_, D, A_, B_): s_.L += cmul(D, A_, B_)
        def put(s_, row, S, const=None):
            o = O + 4*s_.ch + (s_.n % 4); s_.n += 1
            s_.L.append(f"v_cvt_pk_bf16_f32 v{o}, v{S}, v{S+1}" if const is None else f"v_mov_b32 v{o}, {const}")
            if s_.pend is not None and s_.pend[0] // 4 == row // 4:
                r0, o0 = s_.pend; s_.pend = None
                s_.L.append(("ds", f"ds_write2_b32 v{WA+row//4}, v{o0}, v{o} offset0:{(r0%4)*ROWB//4} offset1:{(row%4)*ROWB//4}"))
            else:
                s_.flush(); s_.pend = (row, o)
        def flush(s_):
            if s_.pend is not None:
                r0, o0 = s_.pend; s_.pend = None
                s_.L.append(("ds", f"ds_write_b32 v{vWr}, v{o0} offset:{r0*ROWB}"))
    def emit(seq):
        for x in seq:
            if isinstance(x, tuple): a.ds(x[1], "w")
            else: a(x)
    def interleave(*chains):
        out = []; n = max(len(c) for c in chains)
        for i in range(n):
            for c in chains:
                if i < len(c): out.append(c[i])
        return out
    for k in range(6): a(f"v_lshlrev_b32 v{un+k}, s{sSh}, v{PR+k}")
    for k in range(6): a(f"v_and_b32 v{un+k}, 0xffff0000, v{un+k}")
    ar_, ai_, br_, bi_, cr_, ci_ = range(un, un+6)
    a(f"v_mul_f32 v{ar_}, v{vDt}, v{ar_}\nv_mul_f32 v{ai_}, v{vDt}, v{ai_}\nv_mul_f32 v{br_}, v{vDt}, v{br_}\nv_mul_f32 v{bi_}, v{vDt}, v{bi_}")
    a(f"v_mul_f32 v{ar_}, 0x3fb8aa3b, v{ar_}\nv_mul_f32 v{ai_}, 0.15915494, v{ai_}")
    m = un + 6
    for k, lit in enumerate(("1.0", "0x41800000", "0x43800000")):
        a(f"v_mul_f32 v{m+k}, {lit}, v{ar_}\nv_mul_f32 v{m+3+k}, {lit}, v{ai_}")
    for k in range(3): a(f"v_fract_f32 v{m+3+k}, v{m+3+k}")
    for k in range(3): a(f"v_exp_f32 v{m+k}, v{m+k}")
    for k in range(3): a(f"v_cos_f32 v{m+6+k}, v{m+3+k}\nv_sin_f32 v{m+9+k}, v{m+3+k}")
    emit(cmul(X, cr_, br_))
    a(f"v_mul_f32 v{Z+2}, v{m}, v{m+6}\nv_mul_f32 v{Z+3}, v{m}, v{m+9}")
    a(f"v_mul_f32 v{Z16}, v{m+1}, v{m+7}\nv_mul_f32 v{Z16+1}, v{m+1}, -v{m+10}")
    a(f"v_mul_f32 v{ZC}, v{m+2}, v{m+8}\nv_mul_f32 v{ZC+1}, v{m+2}, v{m+11}")
    a(f"v_xor_b32 v{X+1}, 0x80000000, v{X+1}")
    cX, cZ, cC = Ch(0), Ch(1), Ch(2)
    cX.put(0, X)
    for i in range(1, 16):
        cX.mul(X + 2*(i & 1), X + 2*((i-1) & 1), Z16); cX.put(i, X + 2*(i & 1))
    cZ.put(16, 0, const="0x3f80"); cZ.put(17, Z+2)
    for f in range(2, 16):
        cZ.mul(Z + 2*f, Z + 2*(f//2), Z + 2*(f - f//2)); cZ.put(16 + f, Z + 2*f)
    for c in range(2, 9): cC.mul(ZC + 2*(c-1), ZC + 2*(c//2 - 1), ZC + 2*(c - c//2 - 1))
    emit(interleave(cX.L, cZ.L, cC.L))
    for s in range(4):
        a.ds(f"ds_read_b128 {vr(FRG+16*s,4)}, v{vRdX} offset:{64*s}", ("k", s))
        a.ds(f"ds_read_b128 {vr(FRG+16*s+4,4)}, v{vRdX} offset:{64*s+16*ROWB}", ("k", s))
    groups = [[(0, 1, 0), (1, 1, 2), (2, 1, 4), (3, 1, 6), (16, 4, 0), (17, 4, 8), (24, 8, 0)],
              [(4, 1, 8), (5, 1, 10), (6, 1, 12), (7, 1, 14), (18, 5, 0), (19, 5, 8)],
              [(8, 2, 0), (9, 2, 4), (10, 2, 8), (11, 2, 12), (20, 6, 0), (21, 6, 8)],
              [(12, 3, 0), (13, 3, 4), (14, 3, 8), (15, 3, 12), (22, 7, 0), (23, 7, 8)]]
    chains = []
    for k, g in enumerate(groups):
        c_ = Ch(k); d = T + 2*k
        for row, c, f in g:
            if f == 0: c_.put(row, ZC + 2*(c-1))
            else: c_.mul(d, ZC + 2*(c-1), Z + 2*f); c_.put(row, d)
        c_.flush(); chains.append(c_.L)
    emit(interleave(*chains))
    for s in range(4):
        a.ds(f"ds_read_b128 {vr(FRG+16*s+8,4)}, v{vRdX} offset:{64*s}", ("k2", s))
        a.ds(f"ds_read_b128 {vr(FRG+16*s+12,4)}, v{vRdY2} offset:{64*s}", ("k2", s))
    a.wait(lg=("k", 3))
    for s in range(4): a(f"v_mfma_f32_16x16x32_bf16 {vr(KA,4)}, {vr(FRG+16*s+4,4)}, {vr(FRG+16*s,4)}, {'0' if s == 0 else vr(KA,4)}")
    for s in range(4):
        a.wait(lg=("k2", s))
        for t in (1, 2): a(f"v_mfma_f32_16x16x32_bf16 {vr(KA+4*t,4)}, {vr(FRG+16*s+4+4*t,4)}, {vr(FRG+16*s,4)}, {'0' if s == 0 else vr(KA+4*t,4)}")
    ts(a, 21)
    a.lq = lq0
def kgen_partial(a):
    a(f"v_lshl_add_u32 v2, v1, 4, s{sScr}\ns_nop 6")
    for t in range(3): a.ds(f"ds_write_b128 v2, {vr(KA+4*t,4)} offset:{1024*t}", "w")

sUk, sUc, sFp = 12, 13, 100
def l2touch(a):
    first = 220 - 80*OPT["l2t"] if OPT["l2t"] < 3 else 22
    for rnd in range(OPT["l2t"]):
        a(f"s_lshr_b32 s8, s2, 3\ns_lshl_b32 s8, s8, 2\ns_add_u32 s8, s8, s{sWave}\ns_add_u32 s8, s8, {first+80*rnd}")
        if first + 80*rnd + 79 >= 220: a(f"s_cmp_ge_u32 s8, 220\ns_cbranch_scc1 L_l2e")
        a(f"s_mul_i32 s9, s8, 2979\ns_lshr_b32 s9, s9, 16\ns_mul_i32 s10, s9, 22\ns_sub_u32 s8, s8, s10")
        a(f"s_and_b32 s10, s2, 3\ns_lshl_b32 s10, s10, 3\ns_add_u32 s10, s10, s8\ns_mul_i32 s10, s10, {64*1280}\ns_lshl_b32 s11, s9, 7\ns_add_u32 s10, s10, s11")
        a(f"s_bfe_u32 s11, s2, 0x10002\ns_sub_u32 s14, 13, s11\ns_sub_u32 s15, s8, 8\ns_min_u32 s14, s14, s15\ns_lshl_b32 s14, s14, 7\ns_mul_i32 s11, s11, 1792\ns_add_u32 s11, s11, s14\ns_mul_i32 s14, s9, {64*3456}\ns_add_u32 s11, s11, s14")
        a(f"s_cmp_lt_u32 s8, 8\ns_cselect_b32 s10, s10, s11\ns_movk_i32 s11, 3456\ns_cselect_b32 s11, 1280, s11\ns_cselect_b64 s[14:15], {sr(pU,2)}, {sr(pW1,2)}")
        a(f"v_mul_u32_u24 v3, s11, v1\nv_add_u32 v3, s10, v3")
        a(f"global_load_dword v{250+rnd}, v3, s[14:15]")
    a("L_l2e:")
def xunit_store(a):
    RL = 24
    a(f"v_bfe_u32 v2, v1, 2, 2\nv_sub_u32 v3, 3, v2\nv_lshrrev_b32 v41, 4, v1\nv_lshl_add_u32 v3, v41, 3, v3")
    a(f"v_bfe_u32 v42, v3, 1, 3\nv_bfe_u32 v43, v1, 1, 1\nv_xor_b32 v42, v42, v43\nv_lshlrev_b32 v42, 4, v42\nv_lshl_add_u32 v42, v3, 7, v42\nv_and_b32 v43, 1, v1\nv_lshl_add_u32 v42, v43, 3, v42")
    for m in range(4): a(f"v_xor_b32 v{44+m}, {32*m}, v42\nv_add_u32 v{44+m}, s{sMx}, v{44+m}")
    a.wait(vm=("x", 0))
    for t in range(4):
        a.ds(f"ds_read_b64_tr_b16 {vr(RL+4*t,2)}, v{44+(t^1)} offset:512", ("rl", t))
        a.ds(f"ds_read_b64_tr_b16 {vr(RL+4*t+2,2)}, v{44+t}", ("rl", t))
    a(f"v_and_b32 v42, 3, v1\nv_xor_b32 v42, s{sWave}, v42\nv_lshlrev_b32 v42, 4, v42\nv_lshl_add_u32 v42, v41, 6, v42\nv_lshl_add_u32 v43, v2, 14, v42")
    a(f"s_lshl_b32 s{sUk}, s{sRb}, 2\ns_add_u32 s{sUk}, s{sUk}, s{sWave}\ns_lshl_b32 s10, s{sK0}, 18\ns_lshl_b32 s11, s{sUk}, 8\ns_add_u32 s10, s10, s11\ns_add_u32 s10, s10, {UT_OFF}")
    for t in range(4):
        a.wait(lg=("rl", t))
        a(f"buffer_store_dwordx4 {vr(RL+4*t,4)}, v43, {sr(dWs,4)}, s10 offen {SC1}")
        if t < 3: a(f"s_add_u32 s10, s10, 0x10000")
    a(f"s_lshl_b32 s{sFp}, s{sK0}, 6\ns_add_u32 s{sFp}, s{sFp}, s{sUk}\ns_lshl_b32 s{sFp}, s{sFp}, 6\ns_add_u32 s{sFp}, s{sFp}, {FP}")
def ssm(a):
    a.reset_q()
    sT, sP = 80, 5
    mOdd, m3, mN0 = 76, 78, 12
    cv = lambda d, x, y: a(f"v_cvt_pk_bf16_f32 v{d}, v{x}, v{y}")
    E = 24; Q = 48; RL = 88; PT = 136
    vA = 184; vB = 192; DK = 196
    a(f"s_setprio {OPT['pS0']}")
    a(f"s_mul_i32 s{sP}, s{sWave}, {SCR}\ns_add_u32 s{sP}, s{sP}, {PB}\ns_mul_i32 s{sT}, s{sWave}, 2816\ns_add_u32 s{sT}, s{sT}, {KC_A}")
    a(f"v_mov_b32 v{vZ}, 0\ns_lshl_b32 s10, s{sWave}, 2\ns_add_u32 s10, s10, {FLG+16}\nv_mov_b32 v12, s10\nds_write_b32 v12, v{vZ}")
    a(f"v_lshlrev_b32 v{vHl}, 4, v1\nv_lshl_add_u32 v14, v1, 4, s{sP}\ns_waitcnt lgkmcnt(0)\ns_barrier")
    n0 = len(a.lines)
    nb = [1]
    def B(n=1):
        for _ in range(n): a("s_barrier")
        nb[0] += n
    if OPT["x_s"] == 1:
        B(20); return
    if OPT["x_s"] == 2: return
    for t in range(3): a.ds(f"ds_read_b128 {vr(PT+4*t,4)}, v14 offset:{1024*t}", "pt")
    a(f"s_mov_b32 s{mOdd}, 0xaaaaaaaa\ns_mov_b32 s{mOdd+1}, 0xaaaaaaaa\ns_mov_b32 s{m3}, 0x88888888\ns_mov_b32 s{m3+1}, 0x88888888\ns_mov_b32 s{mN0}, 0xeeeeeeee\ns_mov_b32 s{mN0+1}, 0xeeeeeeee")
    a(f"v_and_b32 v2, 15, v1\nv_lshrrev_b32 v3, 4, v1")
    a(f"v_lshlrev_b32 v15, 6, v2\nv_lshl_add_u32 v15, v3, 4, v15\nv_add_u32 v15, s{sT}, v15")
    B()
    nonce_load(a, vNo, vZ)
    a(f"v_lshlrev_b32 v16, 5, v2\nv_lshl_add_u32 v16, v3, 4, v16\nv_lshlrev_b32 v17, 4, v2\nv_lshl_add_u32 v17, v3, 8, v17\nv_cmp_gt_u32 vcc, 32, v1\ns_nop 1\nv_cndmask_b32 v16, v17, v16, vcc\nv_add_u32 v16, s{sT}, v16")
    a(f"v_lshlrev_b32 v17, 3, v2\nv_lshl_add_u32 v17, v3, 7, v17\nv_add_u32 v17, s{sT}, v17")
    a(f"v_lshl_add_u32 v18, v1, 2, s{sT}")
    B()
    a.wait(lg="pt")
    for r in range(11): a(f"v_add_f32 v{KA+r}, v{KA+r}, v{PT+r}")
    a.ds(f"ds_write_b128 v15, {vr(KA,4)}", "w")
    a.ds(f"ds_write_b128 v16, {vr(KA+4,4)} offset:1024", "w")
    a.ds(f"ds_write_b64 v17, {vr(KA+8,2)} offset:2048", "w")
    a.ds(f"ds_write_b32 v18, v{KA+10} offset:2560", "w")
    B()
    a(f"v_lshl_add_u32 v19, v1, 4, s{sT}\nv_lshl_add_u32 v20, v1, 3, s{sT}")
    a(f"v_lshrrev_b32 v21, 1, v1\nv_lshl_add_u32 v21, v21, 2, s{sT}\nv_add_u32 v21, 2048, v21\nv_add_u32 v22, 1536, v18\nv_mov_b32 v23, s{sT}")
    a.ds(f"ds_read_b128 {vr(E,4)}, v19", "e"); a.ds(f"ds_read_b32 v{E+4}, v19 offset:16", "e"); a.ds(f"ds_read_b32 v{E+5}, v23", "e")
    a.ds(f"ds_read_b64 {vr(E+6,2)}, v20 offset:1024", "e"); a.ds(f"ds_read_b32 v{E+8}, v20 offset:1032", "e")
    B()
    for w in (2, 3): a.ds(f"ds_read2_b32 {vr(E+10+2*(w-2),2)}, v22 offset0:{64*(w-2)} offset1:{64*(w-2)+1}", "e2")
    for w in range(4, 8): a.ds(f"ds_read2_b32 {vr(E+14+2*(w-4),2)}, v21 offset0:{32*(w-4)} offset1:{32*(w-4)+1}", "e2")
    B()
    nonce_get(a, vNo, vZ)
    a(f"v_and_b32 v2, 15, v1\nv_lshrrev_b32 v3, 4, v1\nv_lshlrev_b32 v21, 3, v3\nv_sub_u32 v21, v2, v21")
    a(f"v_lshl_add_u32 v22, v21, 2, s{sP}")
    for aa in range(8): a(f"v_add_u32 v{vA+aa}, {4*(25 + 256*aa)}, v22")
    a(f"v_lshl_add_u32 v22, v2, 1, v3")
    for m in range(4):
        if m % 2 == 0: B()
        a(f"v_add_u32 v23, {14 - 4*m}, v22\nv_lshrrev_b32 v20, 2, v23\nv_xor_b32 v20, s{sWave}, v20\nv_and_b32 v20, 3, v20\nv_lshlrev_b32 v20, 4, v20\nv_lshl_add_u32 v20, v23, 6, v20\nv_add_u32 v{vB+m}, {U_A}, v20")
    B()
    a(f"v_sub_u32 v21, -9, v21\nv_and_b32 v22, 1, v21\nv_lshlrev_b32 v22, 4, v22\nv_mov_b32 v23, s{sDsk}\nv_lshlrev_b32 v22, v22, v23\nv_ashrrev_i32 v21, 1, v21")
    for p in range(4): a(f"v_cmp_eq_u32 vcc, {p}, v21\ns_nop 1\nv_cndmask_b32 v{DK+p}, 0, v22, vcc")
    B()
    a(f"s_lshr_b32 s9, s2, 4\ns_lshl_b32 s9, s9, 2\ns_add_u32 s9, s9, s{sWave}\ns_lshl_b32 s9, s9, 10\ns_add_u32 s9, s9, {FP}\nv_and_b32 v2, 15, v1\nv_lshl_add_u32 v{vFa}, v2, 6, s9")
    a(f"s_lshl_b32 s9, s2, 2\ns_add_u32 s9, s9, s{sWave}\ns_lshl_b32 s9, s9, 12\ns_add_u32 s9, s9, {UT_OFF}\ns_lshl_b32 s10, s{sWave}, 12\ns_add_u32 m0, s10, {U_A + 2048}\nv_mov_b32 v13, {FLG}")
    a.wait(lg="e2")
    for e in range(4): cv(Q+e, E+e, E+e+1)
    cv(Q+4, E+6, E+6); cv(Q+5, E+6, E+7); cv(Q+6, E+7, E+8); cv(Q+7, E+8, E+8)
    a(f"v_mov_b32 v{Q+32}, 0\nv_mov_b32 v{Q+33}, 0\nv_mov_b32 v{Q+34}, 0\nv_cvt_pk_bf16_f32 v{Q+35}, 0, v{E+5}\nv_cndmask_b32 v{Q+35}, 0, v{Q+35}, {sr(m3,2)}")
    for w in range(2, 8):
        if w % 2 == 0: B()
        if nb[0] - 1 == OPT["s_pp"] and w % 2 == 0: flag_load(a, vFl, vFa, "fp")
        q = Q+4*w
        if w < 4:
            al = E+10+2*(w-2); be = al+1
            a(f"v_cndmask_b32 v2, v{al}, v{be}, {sr(mOdd,2)}")
            cv(q, al, al); cv(q+3, be, be); cv(q+1, al, 2); cv(q+2, 2, be)
        else:
            al = E+14+2*(w-4); be = al+1
            a(f"v_cndmask_b32 v2, v{al}, v{be}, {sr(m3,2)}\nv_cndmask_b32 v3, v{al}, v{be}, {sr(mOdd,2)}\nv_cndmask_b32 v15, v{al}, v{be}, {sr(mN0,2)}")
            cv(q, 2, 3); cv(q+1, 3, 3); cv(q+2, 3, 3); cv(q+3, 3, 15)
    if OPT["s_pp"] > 12:
        B(OPT["s_pp"] - 12); flag_load(a, vFl, vFa, "fp")
    B(OPT["s_pc"] + 1 - nb[0])
    def udma():
        for e in range(4): a(f"buffer_load_dwordx4 v{vHl}, {sr(dWs,4)}, s9 offen offset:{1024*e} {SC1} lds")
    a.wait(vm="fp")
    a(f"v_cmp_eq_u64 vcc, {sr(sN,2)}, {vr(vFl,2)}\ns_mov_b32 s15, 1\ns_cmp_eq_u64 vcc, -1\ns_cbranch_scc0 L_late\ns_mov_b32 s15, 0")
    udma()
    a("L_late:")
    B(OPT["s_pw"] + 1 - nb[0])
    W = [f"ds_write_b128 v14, {vr(Q+4*w,4)} offset:{64+1024*w}" for w in range(8)]
    W.append(f"s_mov_b64 exec, 0xf\nds_write_b128 v14, {vr(Q+32,4)}\ns_mov_b64 exec, -1\ns_lshl_b32 s10, s{sWave}, 9\ns_add_u32 s10, s10, {U_A}\nv_lshl_add_u32 v2, v1, 3, s10\nds_write_b64 v2, {vr(Q+32,2)}")
    while W:
        for _ in range(OPT["s_pn"]):
            if W: a(W.pop(0))
        if nb[0] < 21: B()
    B(21 - nb[0])
    if OPT["wrap"]: a.lines[n0:] = wrap_prio(a.lines[n0:], OPT["pS0"])
    a(f"s_setprio {OPT['pS1']}\ns_cmp_eq_u32 s15, 0\ns_cbranch_scc1 L_uok")
    flag_check(a, vFl, vFa, "none")
    udma()
    a("L_uok:")
    ts(a)
    a(f"v_mov_b32 v2, 1\ns_waitcnt vmcnt(0)\nds_write_b32 v12, v2")
    a(f"L_su:\nds_read_b128 v[16:19], v13 offset:16\ns_waitcnt lgkmcnt(0)\nv_min3_u32 v2, v16, v17, v18\nv_min_u32 v2, v2, v19\nv_cmp_ne_u32 vcc, 0, v2\ns_cbranch_vccz L_su")
    a.reset_q()
    ts(a)
    AC = 24; FB = 56
    def rdA(rho, aa):
        d = FB + 64*(rho & 1) + 4*aa
        return [(f"ds_read2_b32 {vr(d,2)}, v{vA+aa} offset0:{32*rho} offset1:{32*rho+2}", ("c", rho, aa)),
                (f"ds_read2_b32 {vr(d+2,2)}, v{vA+aa} offset0:{32*rho+4} offset1:{32*rho+6}", ("c", rho, aa))]
    def rdB(rho, b):
        d = FB + 64*(rho & 1) + 32 + 4*b
        return [(f"ds_read_b128 {vr(d,4)}, v{vB+(rho&3)} offset:{2048*b + (1024 if rho < 4 else 0)}", ("c", rho, b))]
    def rds(rho):
        L = []
        for k in range(8): L += rdA(rho, k) + rdB(rho, k)
        return L
    for x in rds(0): a.ds(*x)
    first = [True]*8
    for rho in range(8):
        nxt = rds(rho + 1) if rho < 7 else []
        base = FB + 64*(rho & 1)
        ms = []
        for k in range(8):
            grp = [(aa, b) for aa in range(k+1) for b in range(k+1) if max(aa, b) == k and aa + b < 8]
            if rho == 0: grp.append((-1, k))
            ms.append(grp)
        cnt = 0
        for k in range(8):
            a.wait(lg=("c", rho, k))
            for aa, b in ms[k]:
                Tt = b if aa < 0 else aa + b
                A_ = vr(DK, 4) if aa < 0 else vr(base + 4*aa, 4)
                a(f"v_mfma_f32_16x16x32_bf16 {vr(AC+4*Tt,4)}, {A_}, {vr(base+32+4*b,4)}, {'0' if first[Tt] else vr(AC+4*Tt,4)}")
                first[Tt] = False
                cnt += 1
                if cnt > 4 and nxt and rho > 0 or (rho == 0 and k >= 3 and nxt): a.ds(*nxt.pop(0))
        for x in nxt: a.ds(*x)
    ts(a)
    a("s_setprio 3")
    a(f"v_and_b32 v2, 15, v1\nv_lshlrev_b32 v2, 5, v2\nv_bfe_u32 v3, v1, 4, 1\nv_lshl_add_u32 v2, v3, 9, v2\nv_lshrrev_b32 v3, 5, v1\nv_lshl_add_u32 v2, v3, 4, v2")
    a(f"s_lshl_b32 s9, s{sD}, 12\ns_add_u32 s9, s9, {A_OFF}\ns_lshl_b32 s10, s{sD}, 6\ns_add_u32 s10, s10, {FA}")
    for Tp in range(4):
        d = FB + 4*Tp; c = AC + 8*Tp
        cv(d, c, c+1); cv(d+1, c+2, c+3); cv(d+2, c+4, c+5); cv(d+3, c+6, c+7)
    for Tp in range(4):
        d = FB + 4*Tp
        if Tp == 3: a("s_nop 0")
        a(f"v_permlane16_swap_b32 v{d}, v{d+2}\nv_permlane16_swap_b32 v{d+1}, v{d+3}")
        a(f"buffer_store_dwordx4 {vr(d,4)}, v2, {sr(dWs,4)}, s9 offen offset:{1024*Tp} {SC1}")
    ts(a)
    a("s_waitcnt vmcnt(0)")
    set_flag(a, 10, vZ, vNo)
    ts(a)

sWb, sHb, sO, sM2, sT2, sQ, sRot, sCnt, sO2 = 81, 82, 83, 84, 85, 15, 94, 95, 76
def g2_setup(a):
    a(f"s_mul_i32 s{sWb}, s{sDb}, 54\ns_add_u32 s{sWb}, s{sWb}, s{sK}\ns_mul_i32 s{sWb}, s{sWb}, 5120\ns_add_u32 s{sWb}, s{sWb}, {W2P_OFF}")
    a(f"s_mul_i32 s{sM2}, s{sWave}, 20480\ns_cmp_ge_u32 s{sWave}, 2\ns_cselect_b32 s{sCnt}, 13, 14")
    a(f"s_mul_i32 s{sRot}, s{sDb}, 13\ns_lshr_b32 s{sRot}, s{sRot}, 3" if OPT["rot"] else f"s_mov_b32 s{sRot}, 0")
    if OPT["rotb"]: a(f"s_and_b32 s{sT2}, s{sTb}, 3\ns_mul_i32 s{sT2}, s{sT2}, {OPT['rotb']}\ns_add_u32 s{sRot}, s{sRot}, s{sT2}\ns_cmp_ge_u32 s{sRot}, s{sCnt}\ns_cselect_b32 s{sT2}, s{sCnt}, 0\ns_sub_u32 s{sRot}, s{sRot}, s{sT2}")
def koff(j, stride, base, dst):
    return (f"s_add_u32 s{sT2}, s{sRot}, {j}\ns_cmp_ge_u32 s{sT2}, s{sCnt}\ns_cselect_b32 s{sQ}, s{sCnt}, 0\ns_sub_u32 s{sT2}, s{sT2}, s{sQ}\n"
            f"s_mul_i32 s{sT2}, s{sT2}, {stride}\ns_add_u32 s{dst}, s{sT2}, s{base}")
def wreg(j):
    L = []
    for t in range(5):
        pre = koff(j, 5120, sWb, sO) if t == 0 else (f"s_add_u32 s{sO}, s{sO}, 4096" if t == 4 else None)
        L.append((pre, f"buffer_load_dwordx4 {vr(WF+20*(j%5)+4*t,4)}, v{vHl}, {sr(dWs,4)}, s{sO} offen offset:{1024*(t%4)} {SC1}", ("w2", j)))
    return L
def g2_wprefetch():
    L = []
    for j in range(5): L += wreg(j)
    return L
def gemm2(a):
    srd(a, dOut, pOut, 2048*1280)
    sM, sT = sM2, sT2
    ACC = 12
    vH13, vLr = 0, 3
    NK = 14
    def em(x):
        if x[0]: a(x[0])
        a.vm(x[1], x[2])
    full = g2_wprefetch()
    ndone = len(full) - len(PFW_LEFT) if OPT["wpf"] else 0
    lok = a.label("L_frok")
    a(f"s_cmp_eq_u32 s{sFrOk}, 1\ns_cbranch_scc1 {lok}")
    q = list(a.vq)
    a("s_waitcnt vmcnt(0)"); set_flag(a, sHf, vZ, vNo)
    flag_check(a, vFl, vFa, "none")
    a(f"s_setprio {OPT['pG2']}")
    for x in full[:ndone]: em(x)
    a.vq = q
    a(f"{lok}:\ns_setprio {OPT['pG2']}")
    ts(a, 8)
    ldsj = [6, 8, 10, 12] if OPT["alt"] else [10, 11, 12, 13]
    def wlds(j):
        L = []; sl = ldsj.index(j) * 5120
        for t in range(5):
            pre = None
            if t == 0: pre = f"s_add_u32 m0, s{sM}, {sl}\n" + koff(j, 5120, sWb, sO)
            if t == 4: pre = f"s_add_u32 m0, s{sM}, {sl+4096}\ns_add_u32 s{sO}, s{sO}, 4096"
            L.append((pre, f"buffer_load_dwordx4 v{vHl}, {sr(dWs,4)}, s{sO} offen offset:{1024*(t%4)} {SC1} lds", ("wl", j)))
        return L
    PF = full[ndone:]
    for j in ldsj: PF += wlds(j)
    for x in PF[:OPT["w_a"]]: em(x)
    a(f"s_add_u32 s10, s{sCnt}, s{sK}\ns_sub_u32 s10, s10, 1\ns_lshr_b32 s10, s10, 1\ns_lshr_b32 s11, s{sK}, 1\nv_add_u32 v2, s11, v1\nv_min_u32 v2, s10, v2")
    a(f"s_lshl_b32 s10, s{sTb}, 11\ns_add_u32 s10, s10, {FH}\nv_lshl_add_u32 v{vFa}, v2, 6, s10")
    a(f"s_mul_i32 s{sHb}, s{sTb}, 54\ns_add_u32 s{sHb}, s{sHb}, s{sK}\ns_lshl_b32 s{sHb}, s{sHb}, 12")
    a(f"s_cmp_ge_u32 s{sWave}, 2\ns_cselect_b32 s10, 0x7f000000, 0\nv_add_u32 v{vH13}, s10, v{vHl}\nv_add_u32 v{vLr}, s{sM}, v{vHl}")
    a("s_setprio 3")
    a.wait(vm="hst")
    set_flag(a, sHf, vZ, vNo, "hf")
    a(f"s_setprio {OPT['pG2']}")
    ts(a)
    for x in PF[OPT["w_a"]:OPT["w_a"]+OPT["w_b"]]: em(x)
    flag_load(a, vFl, vFa, "fh")
    for x in PF[OPT["w_a"]+OPT["w_b"]:]: em(x)
    a.wait(vm="fh")
    ts(a)
    flag_check(a, vFl, vFa, "fh")
    ts(a)
    def hld(j):
        return [(koff(j, 4096, sHb, sO2) if tt == 0 else None,
                 f"buffer_load_dwordx4 {vr(HF+16*(j%4)+4*tt,4)}, v{vH13 if j == 13 else vHl}, {sr(dWs,4)}, s{sO2} offen offset:{1024*tt} {SC1}", ("h", j)) for tt in range(4)]
    for j in range(4):
        for x in hld(j): em(x)
    a(f"s_mul_i32 s12, s{sDb}, 80\ns_mul_i32 s10, s{sWave}, 20\ns_add_u32 s12, s12, s10\ns_lshl_b32 s10, s12, 6\ns_add_u32 s10, s10, {FA}\nv_lshl_add_u32 v{vFa}, v1, 6, s10")
    a(f"s_lshl_b32 s13, s{sTb}, 2\ns_add_u32 s13, s13, s{sWave}\ns_lshl_b32 s10, s13, 6\ns_add_u32 s10, s10, {FG}")
    a(f"v_cmp_gt_u32 vcc, 20, v1\nv_mov_b32 v2, s10\ns_nop 0\nv_cndmask_b32 v{vFa}, v2, v{vFa}, vcc")
    EP = WF + 80
    for k in range(NK):
        tags = [("h", k), ("w2", k)]
        idx = [max((i for i, t in enumerate(a.vq) if t == tg), default=-1) for tg in tags]
        a.wait(vm=tags[0] if idx[0] >= idx[1] else tags[1], lg=("r", k))
        if k in (0, 5, 10): ts(a)
        Hn = hld(k + 3) if (k >= 1 and k + 3 < NK) else []
        j = k + 5
        Wn = wreg(j) if (j < NK and j not in ldsj) else []
        if j in ldsj: a.wait(vm=("wl", j))
        for t in range(5):
            for tt in range(4):
                c = ACC + 4*(4*t + tt)
                a(f"v_mfma_f32_16x16x32_bf16 {vr(c,4)}, {vr(WF+20*(k%5)+4*t,4)}, {vr(HF+16*(k%4)+4*tt,4)}, {'0' if k == 0 else vr(c,4)}")
                if tt == 1 and Hn: em(Hn.pop(0))
            if Wn: em(Wn.pop(0))
            elif j in ldsj: a.ds(f"ds_read_b128 {vr(WF+20*(k%5)+4*t,4)}, v{vLr} offset:{ldsj.index(j)*5120 + 1024*t}", ("r", j))
        if k == 10:
            flag_load(a, vFl, vFa, "fa")
            for e in range(3):
                a(f"v_lshrrev_b32 v2, 3, v1\nv_add_u32 v2, {8*e}, v2\nv_min_u32 v2, 19, v2\nv_lshlrev_b32 v2, 12, v2\nv_and_b32 v{EP+e}, 7, v1\nv_lshl_add_u32 v{EP+e}, v{EP+e}, 4, v2")
            a(f"v_bfe_u32 v2, v1, 2, 2\nv_lshlrev_b32 v2, 7, v2\nv_and_b32 v{EP+8}, 3, v1\nv_lshl_add_u32 v2, v{EP+8}, 3, v2\ns_lshl_b32 s10, s{sWave}, 5\nv_add_u32 v{EP+8}, s10, v2")
            for t in range(5):
                a(f"v_lshrrev_b32 v2, 4, v1\nv_add_u32 v2, {4*t}, v2\nv_mul_u32_u24 v{EP+9}, 205, v2\nv_lshrrev_b32 v{EP+9}, 10, v{EP+9}\nv_mul_u32_u24 v{EP+9}, {25600-2560}, v{EP+9}\nv_lshl_add_u32 v2, v2, 9, v{EP+9}\nv_add_u32 v{EP+3+t}, v2, v{EP+8}")
    ts(a)
    flag_check(a, vFl, vFa, "fa")
    ts(a)
    a(f"s_lshl_b32 s10, s12, 12\ns_lshl_b32 s11, s{sTb}, 7\ns_add_u32 s10, s10, s11\ns_add_u32 s10, s10, {A_OFF}\ns_mul_i32 s11, s{sWave}, 25600")
    for e in range(3):
        a(f"s_add_u32 m0, s11, {1024*e}\ns_nop 0\nbuffer_load_dwordx4 v{EP+e}, {sr(dWs,4)}, s10 offen {SC1} lds")
    a(f"s_lshl_b32 s10, s13, 6\ns_add_u32 s10, s10, {G_OFF}\nv_and_b32 v6, 15, v1\nv_lshlrev_b32 v7, 2, v6")
    a(f"buffer_load_dword v{EP+10}, v7, {sr(dWs,4)}, s10 offen {SC1}")
    a("s_barrier")
    a(f"s_mul_i32 s{sT}, s{sWave}, 5120\nv_add_u32 v4, s{sT}, v{vHl}\nv_add_u32 v5, {20480*3}, v4")
    lbl = [a.label("L_red") for _ in range(4)]
    lend = a.label("L_redend")
    for w in range(4):
        if w < 3: a(f"s_cmp_lg_u32 s{sWave}, {w}\ns_cbranch_scc1 {lbl[w+1]}")
        for tt in range(4):
            if tt == w: continue
            for t in range(5):
                a(f"ds_write_b128 v{4 if tt < 3 else 5}, {vr(ACC+4*(4*t+tt),4)} offset:{20480*tt + 1024*t if tt < 3 else 1024*t}")
        for t in range(5):
            for e in range(4): a(f"v_mov_b32 v{HF+4*t+e}, v{ACC+4*(4*t+w)+e}")
        a(f"s_waitcnt vmcnt(0) lgkmcnt(0)\ns_barrier")
        srcs = [x for x in range(4) if x != w]
        for si, sw in enumerate(srcs):
            for t in range(5): a(f"ds_read_b128 {vr(ACC+20*si+4*t,4)}, v{vLr} offset:{5120*sw + 1024*t}")
        if w < 3: a(f"s_branch {lend}\n{lbl[w+1]}:")
    a(f"{lend}:")
    AV = HF + 24
    a(f"s_lshl_b32 s10, s13, 4\nv_add_u32 v5, s10, v6\nv_mul_u32_u24 v5, 1280, v5\nv_lshrrev_b32 v2, 4, v1\nv_lshl_add_u32 v5, v2, 3, v5\ns_mul_i32 s{sT}, s{sDb}, 160")
    a(f"v_sub_f32 v{EP+11}, 1.0, v{EP+10}\nv_cvt_pk_bf16_f32 v{EP+11}, v{EP+11}, v{EP+11}\nv_lshlrev_b32 v{EP+11}, 16, v{EP+11}")
    a(f"s_waitcnt lgkmcnt(10)")
    for t in range(5): a(f"ds_read_b64_tr_b16 {vr(AV+2*t,2)}, v{EP+3+t}")
    for si in range(3):
        if si: a(f"s_waitcnt lgkmcnt({15 - 5*si})")
        for r in range(0, 20, 2): a(f"v_pk_add_f32 {vr(HF+r,2)}, {vr(HF+r,2)}, {vr(ACC+20*si+r,2)}")
    a("s_waitcnt lgkmcnt(0)")
    for t in range(5):
        x = EP + 12
        a(f"v_lshlrev_b32 v{x}, 16, v{AV+2*t}\nv_and_b32 v{x+1}, 0xffff0000, v{AV+2*t}\nv_lshlrev_b32 v{x+2}, 16, v{AV+2*t+1}\nv_and_b32 v{x+3}, 0xffff0000, v{AV+2*t+1}")
        for e in range(4): a(f"v_mul_f32 v{x+e}, v{EP+10}, v{x+e}")
        for e in range(4): a(f"v_fmac_f32 v{x+e}, v{EP+11}, v{HF+4*t+e}")
        a(f"v_cvt_pk_bf16_f32 v{AV+2*t}, v{x}, v{x+1}\nv_cvt_pk_bf16_f32 v{AV+2*t+1}, v{x+2}, v{x+3}")
        a(f"buffer_store_dwordx2 {vr(AV+2*t,2)}, v5, {sr(dOut,4)}, s{sT} offen offset:{32*t}")
    ts(a)
    if FINE:
        a("s_waitcnt vmcnt(0)")
        ts(a)

def wrap_prio(lines, lo):
    out = []; hi = False
    isvm = lambda x: x.strip().startswith(("buffer_", "global_"))
    for i, x in enumerate(lines):
        if isvm(x) and not hi:
            out.append("    s_setprio 3"); hi = True
        out.append(x)
        if hi and isvm(x):
            nxt = [y for y in lines[i+1:i+4]]
            if not any(isvm(y) for y in nxt) or any(y.endswith(":") or "branch" in y or "barrier" in y or "waitcnt" in y for y in nxt[:1]):
                out.append(f"    s_setprio {lo}"); hi = False
    return out
def header_comment():
    return open("cdna_kernels/" + NAME + ".s.ref").read().split("; Override launch")[0]

def build(fn):
    a = Asm()
    K = NAME + "_kernel"
    a(header_comment())
    a(f"; @launch grid=({GRID},1,1) block=(512,1,1) lds={LDS_BYTES}")
    a('.amdgcn_target "amdgcn-amd-amdhsa--gfx950"\n.text')
    a(kernel_header(K))
    if FINE: a("s_memrealtime s[96:97]")
    a("s_load_dwordx16 s[16:31], s[0:1], 0\ns_load_dwordx16 s[32:47], s[0:1], 64")
    a(f"s_cmp_ge_u32 s2, {GRID}\ns_cbranch_scc1 L_end")
    a("v_lshrrev_b32 v2, 6, v0\nv_and_b32 v1, 63, v0")
    a(f"v_readfirstlane_b32 s{sWave}, v2")
    if OPT["cpf"]:
        a(f"s_cmp_lt_u32 s2, 224\ns_cbranch_scc1 L_ncp\ns_getpc_b64 s[12:13]\nL_pc:")
        a(f"v_lshlrev_b32 v3, 6, v0\nv_min_u32 v3, L_code_end-L_pc-4, v3\nglobal_load_dword v24, v3, s[12:13]\nL_ncp:")
    a(f"s_lshr_b32 s{sHalf}, s{sWave}, 2\ns_and_b32 s{sWave}, s{sWave}, 3")
    a(f"s_lshr_b32 s10, s2, 3\ns_and_b32 s11, s10, 3\ns_lshr_b32 s10, s10, 2")
    a(f"s_and_b32 s{sRb}, s2, 3\ns_lshl_b32 s{sRb}, s{sRb}, 2\ns_add_u32 s{sRb}, s{sRb}, s11")
    a(f"s_bfe_u32 s{sCg}, s2, 0x10002\ns_mul_i32 s{sCg}, s{sCg}, 7\ns_add_u32 s{sCg}, s{sCg}, s10")
    gemm1_addr(a)
    if FINE:
        a(f"s_waitcnt lgkmcnt(0)\nv_mov_b32 v{vTS}, 0\nv_writelane_b32 v{vTS}, s96, 63")
        ts(a, 0)
    a(f"s_cmp_ge_u32 s2, {NS}\ns_waitcnt lgkmcnt(0)\ns_cbranch_scc1 L_nok")
    kgen_loads(a)
    a("L_nok:")
    srd(a, dWs, pWs, WS_SPAN)
    srd(a, dDbg, pDbg, 256)
    srd(a, dU, pU, 2048*1280)
    a(f"s_cmp_eq_u32 s{sHalf}, 0\ns_cbranch_scc1 L_gh\ns_cmp_ge_u32 s2, {NS}\ns_cbranch_scc1 L_load")
    if OPT["late"]: a("s_waitcnt vmcnt(0)")
    if OPT["l2t"]: l2touch(a)
    a(f"s_branch L_kg\nL_gh:\ns_cmp_ge_u32 s2, 224\ns_cbranch_scc1 L_p")
    gemm1_head(a)
    a(f"s_cmp_ge_u32 s2, {NS}\ns_cbranch_scc1 L_gb")
    q0 = list(a.vq)
    a("L_kg:")
    kgen(a, len(a.vq))
    a(f"s_cmp_lg_u32 s{sHalf}, 0\ns_cbranch_scc1 L_s")
    kgen_partial(a)
    xunit_store(a)
    ts(a, 22)
    a.vq = q0
    a("s_branch L_gc\nL_gb:\ns_waitcnt vmcnt(0)\nL_gc:")
    for x in BURST_REST[:OPT["b2"]]:
        a(x[0]); a.vm(*x[1])
    del BURST_REST[:OPT["b2"]]
    a(f"L_g1:\ns_setprio {OPT['pG1']}")
    fine_n[0] = 1
    gemm1_loop(a)
    ts(a)
    a("L_g2:")
    if OPT["x_nog2"]:
        a("s_waitcnt vmcnt(0)"); ts(a, 7)
    else: gemm2(a)
    ts_flush(a)
    a("L_end:\ns_endpgm")
    for x in SLOW: a(x)
    a("L_s:")
    fine_n[0] = 1
    ssm(a)
    ts_flush(a)
    a("s_endpgm")
    a("L_p:")
    ptouch(a)
    fine_n[0] = 1
    pgate(a)
    a("s_branch L_g2")
    a("L_load:")
    fine_n[0] = 1
    loader(a)
    a("L_ldx:")
    ts_flush(a)
    a("s_endpgm")
    a("L_code_end:")
    a('.section .rodata,"a"')
    a(kernel_desc(K, 256))
    errs = check_hazards(a.lines)
    for e in errs: print("HAZARD:", e)
    open(fn, "w").write(a.text())
    print(fn, len(a.lines), "lines;", len(errs), "hazards")

if __name__ == "__main__":
    FINE = "--fine" in sys.argv
    for x in sys.argv[2:]:
        if "=" in x:
            k, v = x.split("="); OPT[k] = int(v)
    build(sys.argv[1])
```

```python
import sys
from asmlib import *
NAME = "gated_mix__ssm_conv_s4__dense_activation_relu__prompt"

H_OFF = 0
UT_OFF = 8 << 20
A_OFF = 12 << 20
G_OFF = 15 << 20
FL_OFF = (15 << 20) + (1 << 19)
FH, FR, FP, FA, FG = FL_OFF, FL_OFF + 0x10000, FL_OFF + 0x20000, FL_OFF + 0x30000, FL_OFF + 0x40000
ST_OFF = 16 << 20
W2P_OFF = 20 << 20
WS_SPAN = 32 << 20
LDS_BYTES = 163840
SB = 106496
NS = 160
GRID = 256
pU, pAre, pAim, pBre, pBim, pCre, pCim, pLdt, pDsk, pBx, pW1, pW2, pGw, pOut, pDbg, pWs = range(16, 48, 2)
dU, dW1, dW2, dWs, dOut, dTmp, dDbg = 48, 52, 56, 60, 64, 68, 72
sWave, sHalf, sN = 3, 92, 98
SC1 = "sc1"
FINE = False
vTS = 11
fine_n = [0]
OPT_DBG = [0, 20, 21, 22, 1, 2, 4, 5, 6, 9, 11, 12, 15, 18]
OPT = dict(dbgwg=-1, late=0, l2t=0, pbar=1, lsplit=384, g1rot=1, b2=8, rotb=3, x_s=0, x_l=0, x_nox=0, x_nog2=0, w_a=4, w_b=8, touch=0, cpf=1, slp=8, pL0=3, rot=1, alt=1, pG1=2, pS0=0, wrap=1, pS1=1, pG2=0,
           burst=8, afirst=1, s_pp=12, s_pc=15, s_pw=20, s_pn=9, l_w=0, l_a=4, g_fp=5, k_fr=0, k_ck=2, k_wr=7, wpf=1, frl=11, frc=14)

def ts(a, idx=None):
    if not FINE: return
    if idx is not None: fine_n[0] = idx
    a(f"s_memrealtime s[90:91]\ns_memtime s[88:89]\ns_waitcnt lgkmcnt(0)\nv_writelane_b32 v{vTS}, s90, {fine_n[0]}\nv_writelane_b32 v{vTS}, s88, {32+fine_n[0]}")
    a.lq.clear()
    fine_n[0] += 1
def ts_flush(a):
    if not FINE: return
    a(f"s_lshl_b32 s93, s{sHalf}, 8\ns_add_u32 s93, s93, s2\ns_lshl_b32 s93, s93, 2\ns_add_u32 s93, s93, s{sWave}\ns_lshl_b32 s93, s93, 8\ns_add_u32 s93, s93, {ST_OFF}\nv_lshlrev_b32 v2, 2, v1")
    a(f"buffer_store_dword v{vTS}, v2, {sr(dWs,4)}, s93 offen\ns_waitcnt vmcnt(0)")
    if OPT["dbgwg"] >= 0:
        l = a.label("L_dbg")
        a(f"s_cmp_lg_u32 s93, {ST_OFF + OPT['dbgwg']*4*256}\ns_cbranch_scc1 {l}")
        a(f"v_subrev_u32 v3, s96, v{vTS}")
        for n, idx in enumerate(OPT_DBG):
            a(f"v_readlane_b32 s10, v3, {idx}\ns_nop 3\nv_writelane_b32 v4, s10, {n}")
        a(f"v_lshlrev_b32 v2, 2, v1\ns_mov_b64 exec, 0x3fff\nbuffer_store_dword v4, v2, {sr(dDbg,4)}, 0 offen offset:8\ns_waitcnt vmcnt(0)\ns_mov_b64 exec, -1\n{l}:")

def nonce_load(a, v, vz, tag="nonce"):
    a.vm(f"buffer_load_dwordx2 {vr(v,2)}, v{vz}, {sr(dDbg,4)}, 0 offen {SC1}", tag)
def nonce_get(a, v, vz, tag="nonce", sCnt=87):
    l = a.label("L_nl"); d = a.label("L_nd")
    a.wait(vm=tag)
    a(f"s_mov_b32 s{sCnt}, 0\n{l}:\nv_readfirstlane_b32 s{sN}, v{v}\nv_readfirstlane_b32 s{sN+1}, v{v+1}\ns_add_u32 s{sCnt}, s{sCnt}, 1")
    a(f"s_min_u32 s86, s{sN}, s{sN+1}\ns_cmp_lg_u32 s86, 0\ns_cbranch_scc1 {d}\ns_cmp_ge_u32 s{sCnt}, 0x8000\ns_cbranch_scc1 {d}")
    a(f"s_sleep 4\nbuffer_load_dwordx2 {vr(v,2)}, v{vz}, {sr(dDbg,4)}, 0 offen {SC1}\ns_waitcnt vmcnt(0)\ns_branch {l}\n{d}:")
def flag_load(a, v, vaddr, tag):
    a.vm(f"buffer_load_dwordx2 {vr(v,2)}, v{vaddr}, {sr(dWs,4)}, 0 offen {SC1}", tag)
def flag_check(a, v, vaddr, tag, sCnt=87, pre=None):
    l = a.label("L_fl"); d = a.label("L_fd")
    a.wait(vm=tag)
    if pre:
        a(f"v_cmp_eq_u64 vcc, {sr(sN,2)}, {vr(v,2)}\ns_nop 0\ns_cmp_eq_u64 vcc, -1\ns_cbranch_scc1 {d}")
        q = list(a.vq); pre(); a.vq = q
    a(f"s_mov_b32 s{sCnt}, 0\n{l}:\nv_cmp_eq_u64 vcc, {sr(sN,2)}, {vr(v,2)}\ns_add_u32 s{sCnt}, s{sCnt}, 1\ns_cmp_eq_u64 vcc, -1\ns_cbranch_scc1 {d}")
    a(f"s_cmp_ge_u32 s{sCnt}, 0x8000\ns_cbranch_scc1 {d}\ns_sleep {OPT['slp']}")
    a(f"buffer_load_dwordx2 {vr(v,2)}, v{vaddr}, {sr(dWs,4)}, 0 offen {SC1}\ns_waitcnt vmcnt(0)\ns_branch {l}\n{d}:")
def set_flag(a, sOff, vz, vn, tag=None):
    a("s_mov_b64 exec, 1")
    a.vm(f"buffer_store_dwordx2 {vr(vn,2)}, v{vz}, {sr(dWs,4)}, s{sOff} offen {SC1}", tag)
    a("s_mov_b64 exec, -1")

vNo, vFl, vZ, vHl, vFa = 4, 6, 8, 9, 10
sTb, sDb, sK, sRb, sCg, sHf = 4, 5, 6, 7, 8, 9

def g_common(a):
    a(f"s_and_b32 s{sTb}, s2, 7\ns_lshl_b32 s{sTb}, s{sTb}, 2\ns_bfe_u32 s{sDb}, s2, 0x20003\ns_add_u32 s{sTb}, s{sTb}, s{sDb}\ns_lshr_b32 s{sDb}, s2, 5")
    a(f"s_mul_i32 s{sK}, s{sWave}, 14\ns_cmp_eq_u32 s{sWave}, 3\ns_cselect_b32 s{sK}, 41, s{sK}")
    a(f"v_mov_b32 v{vZ}, 0\nv_lshlrev_b32 v{vHl}, 4, v1")
    a(f"s_cmp_ge_u32 s{sWave}, 2\ns_cselect_b32 s10, 12, 13\nv_and_b32 v2, 31, v1\nv_min_u32 v2, s10, v2\nv_add_u32 v2, s{sK}, v2")
    a(f"s_mul_i32 s10, s{sDb}, 5\ns_lshr_b32 s10, s10, 2\nv_lshrrev_b32 v3, 5, v1\nv_add_u32 v3, s10, v3\nv_lshlrev_b32 v3, 12, v3\nv_lshl_add_u32 v{vFa}, v2, 6, v3\nv_add_u32 v{vFa}, {FR}, v{vFa}")

vX = [12, 13, 14, 15]; vW = [16, 17]; vRX = [18, 19, 20, 21]; vRW = [22, 23]
sX, sW, sMx, sMw, sT1 = 76, 77, 78, 79, 80
WB = 0; XB = 40960; NXS = 4; NWS = 5
FLG = 159744
BURST_REST = []; SLOW = []; PFW_LEFT = []
sFrOk = 14
vSy, vSa, vSv, vSf = 0, 152, 153, 2
WF = 156; HF = 92
sK0 = 101
def dmaX(c, e):
    pre = ""
    if e % 2 == 0: pre = f"s_add_u32 m0, s{sMx}, {(c%NXS)*16384}"
    if e == 0 and c > 0: pre += f"\ns_add_u32 s{sX}, s{sX}, 128\ns_cmp_eq_u32 s{sX}, 1280\ns_cselect_b32 s{sX}, 0, s{sX}"
    elif e % 2 == 0: pre += "\ns_nop 0"
    return [pre, (f"buffer_load_dwordx4 v{vX[e]}, {sr(dU,4)}, s{sX} offen offset:{1024*e} lds", ("x", c))]
def dmaW(i, e):
    pre = ""
    if e == 0:
        pre = f"s_add_u32 m0, s{sMw}, {(i%NWS)*8192}"
        pre += f"\ns_add_u32 s{sW}, s{sW}, {32*3456}\ns_cmp_eq_u32 s{sW}, {640*3456}\ns_cselect_b32 s{sW}, 0, s{sW}" if i > 0 else "\ns_nop 0"
    return [pre, (f"buffer_load_dwordx4 v{vW[e]}, {sr(dW1,4)}, s{sW} offen offset:{1024*e} lds", ("w", i))]
def gemm1_addr(a):
    sT = sT1; vH = 6
    if OPT["g1rot"]:
        a(f"s_lshl_b32 s{sK0}, s10, 1\ns_bfe_u32 s{sT}, s2, 0x10002\ns_add_u32 s{sK0}, s{sK0}, s{sT}\ns_cmp_ge_u32 s10, 5\ns_cselect_b32 s{sT}, 3, 0\ns_add_u32 s{sK0}, s{sK0}, s{sT}")
        a(f"s_mul_i32 s{sT}, s11, 5\ns_add_u32 s{sT}, s{sT}, 1\ns_lshr_b32 s{sT}, s{sT}, 1\ns_add_u32 s{sK0}, s{sK0}, s{sT}")
        for _ in range(2): a(f"s_cmp_ge_u32 s{sK0}, 10\ns_cselect_b32 s{sT}, 10, 0\ns_sub_u32 s{sK0}, s{sK0}, s{sT}")
    else: a(f"s_mov_b32 s{sK0}, 0")
    a(f"s_lshl_b32 s{sT}, s{sRb}, 7\ns_lshl_b32 s{sMx}, s{sWave}, 5\ns_add_u32 s{sT}, s{sT}, s{sMx}")
    a(f"v_lshrrev_b32 v2, 3, v1\nv_add_u32 v2, s{sT}, v2\nv_mul_u32_u24 v2, 1280, v2")
    a(f"v_lshrrev_b32 v3, 4, v1\nv_xor_b32 v{vH}, v3, v1\nv_and_b32 v{vH}, 7, v{vH}\nv_lshl_add_u32 v{vX[0]}, v{vH}, 4, v2")
    a(f"s_lshl_b32 s{sMx}, s{sWave}, 12\ns_add_u32 s{sMx}, s{sMx}, {XB}")
    a(f"v_xor_b32 v{vX[1]}, 64, v{vX[0]}\nv_add_u32 v{vX[1]}, {8*1280-1024}, v{vX[1]}\nv_add_u32 v{vX[2]}, {16*1280-2048}, v{vX[0]}\nv_add_u32 v{vX[3]}, {16*1280-2048}, v{vX[1]}")
    a(f"s_lshl_b32 s{sT}, s{sWave}, 3\nv_add_u32 v2, s{sT}, v3\nv_mul_u32_u24 v2, 3456, v2\ns_lshl_b32 s{sMw}, s{sCg}, 8\nv_add_u32 v2, s{sMw}, v2")
    a(f"v_lshlrev_b32 v{vW[0]}, 2, v3\nv_xor_b32 v{vW[0]}, v{vW[0]}, v1\nv_and_b32 v{vW[0]}, 15, v{vW[0]}\nv_lshl_add_u32 v{vW[0]}, v{vW[0]}, 4, v2")
    a(f"v_add_u32 v{vW[1]}, {4*3456-1024}, v{vW[0]}")
    a(f"s_lshl_b32 s{sMw}, s{sWave}, 11\ns_add_u32 s{sMw}, s{sMw}, {WB}")
def gemm1_head(a):
    a.reset_q()
    sT = sT1; vH = 6
    def em(L):
        a(L[0]); a.vm(*L[1])
    srd(a, dW1, pW1, 640*3456)
    a(f"s_lshl_b32 s{sX}, s{sK0}, 7\ns_mul_i32 s{sW}, s{sK0}, {64*3456}")
    def addr2():
        g_common(a)
        a(f"s_lshr_b32 s{sT}, s{sWave}, 1\ns_lshl_b32 s{sT}, s{sT}, 13\ns_add_u32 s{sT}, s{sT}, {XB}")
        a(f"v_and_b32 v2, 31, v1\nv_lshlrev_b32 v2, 7, v2\nv_add_u32 v2, s{sT}, v2")
        a(f"v_lshrrev_b32 v3, 5, v1\nv_bfe_u32 v{vH}, v1, 1, 3\nv_xor_b32 v3, v3, v{vH}\nv_lshl_add_u32 v{vRX[0]}, v3, 4, v2")
        for p in range(1, 4): a(f"v_xor_b32 v{vRX[p]}, {32*p}, v{vRX[0]}")
        a(f"v_bfe_u32 v{vH}, v1, 2, 2\nv_lshrrev_b32 v2, 5, v1\nv_lshlrev_b32 v2, 11, v2\nv_lshl_add_u32 v2, v{vH}, 8, v2")
        a(f"s_and_b32 s{sT}, s{sWave}, 1\ns_lshl_b32 s{sT}, s{sT}, 1\nv_xor_b32 v3, s{sT}, v{vH}\nv_lshl_add_u32 v2, v3, 6, v2")
        a(f"v_bfe_u32 v3, v1, 4, 1\nv_lshl_add_u32 v2, v3, 5, v2\nv_and_b32 v3, 3, v1\nv_lshl_add_u32 v2, v3, 3, v2")
        a(f"v_add_u32 v{vRW[0]}, {WB}, v2\nv_xor_b32 v{vRW[1]}, 64, v{vRW[0]}")
    if OPT["afirst"]: addr2()
    if OPT["late"]: a("s_waitcnt vmcnt(0)")
    rest = [dmaX(0, e) for e in range(4)] + [dmaW(0, 0), dmaW(0, 1), dmaW(1, 0), dmaW(1, 1)] + [dmaW(2, 0), dmaW(2, 1), dmaW(3, 0), dmaW(3, 1)] + [dmaX(1, e) for e in range(4)] + [dmaW(4, 0), dmaW(4, 1)] + [dmaX(2, e) for e in range(4)]
    for x in rest[:OPT["burst"]]: em(x)
    BURST_REST[:] = rest[OPT["burst"]:]
    if not OPT["afirst"]: addr2()
def gemm1_loop(a):
    sT = sT1; F = 24; ACC = 88
    def em(L):
        a(L[0]); a.vm(*L[1])
    def reads(i):
        O = []
        for p in range(2):
            b = F + 32*(i & 1) + 16*p; L = []
            for bf in range(2):
                for u in range(2):
                    L.append(f"ds_read_b64_tr_b16 {vr(b+4*bf+2*u,2)}, v{vRW[bf]} offset:{(i%NWS)*8192 + 4096*p + 1024*u}")
            for bt in range(2):
                L.append(f"ds_read_b128 {vr(b+8+4*bt,4)}, v{vRX[2*(i&1)+p]} offset:{((i>>1)%NXS)*16384 + 4096*bt}")
            O += [L[0], L[1], L[4], L[2], L[3], L[5]]
        return O
    def mfmas(i):
        L = []
        order = [(p, bf, bt) for p in range(2) for bf, bt in ((0,0),(1,0),(0,1),(1,1))]
        if i == 19: order = [(p, bf, bt) for bf, bt in ((0,0),(1,0),(0,1),(1,1)) for p in range(2)]
        for p, bf, bt in order:
            b = F + 32*(i & 1) + 16*p
            c = ACC + 16*(2*bf+bt)
            L.append(f"v_mfma_f32_32x32x16_bf16 {vr(c,16)}, {vr(b+4*bf,4)}, {vr(b+8+4*bt,4)}, {'0' if (i == 0 and p == 0) else vr(c,16)}")
        return L
    def stage_tag(i):
        tags = [("w", i), ("x", i >> 1)]
        idx = [max((k for k, t in enumerate(a.vq) if t == tg), default=-1) for tg in tags]
        return tags[0] if idx[0] >= idx[1] else tags[1]
    PFW = []; CARRY = []
    for i in range(21):
        a.wait(vm=stage_tag(i) if i < 20 else None, lg="all")
        a("s_barrier")
        if i in (0, 4, 10, 16): ts(a)
        D = []
        if i >= 1 and i + 4 < 20: D += [dmaW(i + 4, 0), dmaW(i + 4, 1)]
        c = (i >> 1) + 3
        if c < 10: D += [dmaX(c, 2*(i & 1)), dmaX(c, 2*(i & 1) + 1)]
        if BURST_REST or CARRY:
            D = CARRY + BURST_REST + D; del BURST_REST[:]
            CARRY = D[6:]; D = D[:6]
        dpos = (1, 3, 5, 6) if len(D) <= 4 else (0, 1, 3, 4, 5, 6)
        R = reads(i) if i < 20 else []
        M = mfmas(i - 1) if i > 0 else []
        if i == OPT["frc"] + 1 and OPT["wpf"]: PFW = g2_wprefetch()
        for k in range(8):
            if M: a(M[k])
            for _ in range(3):
                if R: a.ds(R.pop(0), ("f", i))
            if k in dpos and D: em(D.pop(0))
            elif k in (1, 3, 4, 5, 6) and PFW and not D:
                x = PFW.pop(0)
                if x[0]: a(x[0])
                a.vm(x[1], x[2])
            if k == 7 and i == 0: nonce_load(a, vNo, vZ)
            if k == 4 and i == OPT["g_fp"]:
                nonce_get(a, vNo, vZ)
                lf = a.label("L_nfp")
                a(f"s_cmp_ge_u32 s2, {NS}\ns_cbranch_scc1 {lf}")
                q = list(a.vq); set_flag(a, sFp, vZ, vNo); a.vq = q
                a(f"{lf}:")
            if k == 7 and i == OPT["frl"]: flag_load(a, vFl, vFa, "fr")
            if k == 4 and i == OPT["frc"]:
                a.wait(vm="fr")
                a(f"v_cmp_eq_u64 vcc, {sr(sN,2)}, {vr(vFl,2)}\ns_nop 0\ns_cmp_eq_u64 vcc, -1\ns_cselect_b32 s{sFrOk}, 1, 0")
            if k == 2 and i == OPT["frc"]: g2_setup(a)
        assert not R and not D
    PFW_LEFT[:] = PFW
    ts(a)
    a("s_setprio 3")
    vH = 12
    lskip = a.label("L_g1skip"); lgo = a.label("L_g1go")
    a(f"s_and_b32 s{sT}, s{sWave}, 1\ns_lshl_b32 s{sX}, s{sCg}, 1\ns_add_u32 s{sT}, s{sT}, s{sX}")
    a(f"s_lshr_b32 s{sX}, s{sWave}, 1\ns_lshl_b32 s{sW}, s{sRb}, 1\ns_add_u32 s{sX}, s{sX}, s{sW}")
    a(f"s_lshl_b32 s{sHf}, s{sX}, 5\ns_add_u32 s{sHf}, s{sHf}, s{sT}\ns_lshl_b32 s{sHf}, s{sHf}, 6\ns_add_u32 s{sHf}, s{sHf}, {FH}")
    a(f"s_cmp_lt_u32 s{sT}, 27\ns_cbranch_scc0 {lskip}")
    a(f"s_mul_i32 s{sX}, s{sX}, 27\ns_add_u32 s{sX}, s{sX}, s{sT}\ns_lshl_b32 s{sX}, s{sX}, 13\ns_add_u32 s{sW}, s{sX}, 4096")
    a(f"v_bfe_u32 v2, v1, 4, 1\nv_lshlrev_b32 v2, 10, v2\nv_lshrrev_b32 v3, 5, v1\nv_lshl_add_u32 v2, v3, 8, v2\nv_and_b32 v3, 15, v1\nv_lshl_add_u32 v{vH}, v3, 4, v2")
    n = 0
    for bf, bt in ((0,0),(1,0),(0,1),(1,1)):
        c = ACC + 16*(2*bf+bt)
        for half in range(2):
            d = F + 4*n; n += 1
            for e in range(4): a(f"v_cvt_pk_bf16_f32 v{d+e}, v{c+8*half+2*e}, v{c+8*half+2*e+1}")
            for e in range(4): a(f"v_pk_max_i16 v{d+e}, v{d+e}, 0")
            a.vm(f"buffer_store_dwordx4 {vr(d,4)}, v{vH}, {sr(dWs,4)}, s{sW if bf else sX} offen offset:{2048*bt + 512*half} {SC1}", "hst")
    a(f"{lskip}:")

def unit_split(a, sUn, sUk, sUc):
    a(f"s_mul_i32 s{sUk}, s{sUn}, 6554\ns_lshr_b32 s{sUk}, s{sUk}, 16\ns_mul_i32 s{sUc}, s{sUk}, 10\ns_sub_u32 s{sUc}, s{sUn}, s{sUc}")
def unit_dma(a, srd_, sUk, sUc, sL, loff, vOff, tag, sT=10, sT2=11):
    a(f"s_mul_i32 s{sT}, s{sUk}, {32*1280}\ns_lshl_b32 s{sT2}, s{sUc}, 7\ns_add_u32 s{sT}, s{sT}, s{sT2}")
    for e in range(4):
        a(f"s_add_u32 m0, s{sL}, {loff + 1024*e}")
        a(f"s_add_u32 s{sT2}, s{sT}, {8*1280*e}")
        a.vm(f"buffer_load_dwordx4 v{vOff}, {sr(srd_,4)}, s{sT2} offen lds", tag)
def unit_voff(a, v):
    a(f"v_lshrrev_b32 v{v}, 3, v1\nv_mul_u32_u24 v{v}, 1280, v{v}\nv_and_b32 v3, 7, v1\nv_lshl_add_u32 v{v}, v3, 4, v{v}")

def ptouch(a):
    a(f"v_mov_b32 v{vZ}, 0\ns_sub_u32 s79, s2, 224\ns_lshl_b32 s10, s79, 2\ns_add_u32 s10, s10, s{sWave}")
    a(f"s_cmp_lg_u32 s10, 0\ns_cbranch_scc1 L_nonn")
    a(f"s_memrealtime {sr(sN,2)}\ns_waitcnt lgkmcnt(0)\ns_or_b32 s12, s{sN}, 1\ns_or_b32 s13, s{sN+1}, 0x80000000\nv_mov_b32 v{vNo}, s12\nv_mov_b32 v{vNo+1}, s13")
    a(f"s_mov_b64 exec, 1\nbuffer_store_dwordx2 {vr(vNo,2)}, v{vZ}, {sr(dDbg,4)}, 0 offen {SC1}\ns_mov_b64 exec, -1")
    a("L_nonn:")
    if OPT["pbar"]: a("s_barrier")
    if OPT["touch"]:
        for rnd in range(2):
            a(f"s_add_u32 s11, s10, {27+128*rnd}\ns_min_u32 s11, s11, 269\ns_lshl_b32 s11, s11, 13\nv_lshl_add_u32 v12, v1, 7, s11\nglobal_load_dword v13, v12, {sr(pW1,2)}")
def loader(a):
    a.reset_q()
    if OPT["x_l"] == 2: return
    a(f"s_setprio {OPT['pL0']}")
    srd(a, dW2, pW2, 1728*1280)
    sUn, sL = 5, 12
    K = [6, 8]; C = [7, 9]
    a(f"s_sub_u32 s{sUn}, s2, {NS}\ns_lshl_b32 s{sUn}, s{sUn}, 2\ns_add_u32 s{sUn}, s{sUn}, s{sWave}\ns_lshl_b32 s{sL}, s{sWave}, 13\ns_add_u32 s{sL}, s{sL}, {SB}")
    unit_voff(a, 2)
    if OPT["lsplit"] == 256:
        a(f"s_cmp_ge_u32 s{sUn}, 284\ns_cbranch_scc1 L_ldx")
    unit_split(a, sUn, K[0], C[0])
    unit_dma(a, dW2, K[0], C[0], sL, 0, 2, "a")
    a(f"s_add_u32 s{sUn}, s{sUn}, 156\ns_cmp_lt_u32 s{sUn}, 384\ns_cselect_b32 s{sUn}, 600, s{sUn}")
    unit_split(a, sUn, K[1], C[1])
    a(f"s_cmp_ge_u32 s{sUn}, 540\ns_cbranch_scc1 L_ld1")
    unit_dma(a, dW2, K[1], C[1], sL, 4096, 2, "b")
    a("L_ld1:")
    a(f"v_mov_b32 v{vZ}, 0\nv_lshlrev_b32 v{vHl}, 4, v1")
    a(f"v_lshrrev_b32 v2, 5, v1\nv_lshlrev_b32 v2, 4, v2\nv_bfe_u32 v3, v1, 2, 3\nv_add_u32 v2, v2, v3")
    a(f"v_lshlrev_b32 v2, 7, v2\nv_and_b32 v3, 3, v1\nv_lshl_add_u32 v2, v3, 3, v2\nv_add_u32 v12, s{sL}, v2")
    a(f"s_cmp_ge_u32 s{sUn}, 540\ns_cselect_b32 s10, 0x7f000000, 0\nv_add_u32 v13, s10, v{vHl}\ns_cselect_b32 s{K[1]}, 63, s{K[1]}\ns_cselect_b32 s{C[1]}, 0, s{C[1]}")
    def bar(n=1):
        l = a.label("L_lb")
        a(f"s_cmp_ge_u32 s2, 224\ns_cbranch_scc1 {l}")
        for _ in range(n): a("s_barrier")
        a(f"{l}:")
    if OPT["x_l"] == 1:
        bar(21); return
    n0 = len(a.lines)
    if OPT["l_w"]: bar(OPT["l_w"])
    a("s_waitcnt vmcnt(0)")
    ts(a)
    for n in range(2):
        for t in range(4):
            for u in range(2): a.ds(f"ds_read_b64_tr_b16 {vr(16+16*n+4*t+2*u,2)}, v12 offset:{4096*n + 1024*u + 32*t}", ("rl", n))
    for n in range(2):
        for t in range(4):
            a(f"s_lshl_b32 s14, s{C[n]}, 2\ns_add_u32 s14, s14, {t}\ns_mul_i32 s15, s14, 205\ns_lshr_b32 s15, s15, 10\ns_mul_i32 s15, s15, {54*5-5}\ns_add_u32 s14, s14, s15\ns_mul_i32 s15, s{K[n]}, 5\ns_add_u32 s14, s14, s15\ns_lshl_b32 s14, s14, 10\ns_add_u32 s14, s14, {W2P_OFF}")
            a.wait(lg=("rl", n))
            a(f"buffer_store_dwordx4 {vr(16+16*n+4*t,4)}, v{13 if n else vHl}, {sr(dWs,4)}, s14 offen {SC1}")
    nonce_load(a, vNo, vZ)
    if OPT["pbar"]: a("s_cmp_lt_u32 s2, 224\ns_cbranch_scc1 L_ldp\ns_barrier\nL_ldp:")
    ts(a)
    bar(OPT["l_a"])
    a("s_waitcnt vmcnt(0)")
    nonce_get(a, vNo, vZ, tag="none")
    for n in range(2):
        if n: a(f"s_cmp_ge_u32 s{sUn}, 540\ns_cbranch_scc1 L_ld3")
        a(f"s_lshl_b32 s14, s{C[n]}, 6\ns_add_u32 s14, s14, s{K[n]}\ns_lshl_b32 s14, s14, 6\ns_add_u32 s14, s14, {FR}")
        set_flag(a, 14, vZ, vNo)
    a("L_ld3:")
    if OPT["wrap"]: a.lines[n0:] = wrap_prio(a.lines[n0:], 0)
    ts(a)
    bar(21 - OPT["l_w"] - OPT["l_a"])
def pgate(a):
    a.reset_q()
    sT, sM, sO, sP = 76, 77, 78, 79
    ts(a)
    g_common(a)
    srd(a, dTmp, pGw, 1280)
    vD = 14; vG = 26; vS = 30
    GW = 32; XF = 112; ACC = 224
    a(f"s_and_b32 s{sT}, s{sP}, 3\ns_lshl_b32 s{sT}, s{sT}, 3\ns_lshr_b32 s{sM}, s{sP}, 2\ns_add_u32 s{sT}, s{sT}, s{sM}")
    a(f"s_lshl_b32 s{sT}, s{sT}, 6\ns_lshl_b32 s{sM}, s{sWave}, 4\ns_add_u32 s{sT}, s{sT}, s{sM}\ns_mul_i32 s{sO}, s{sT}, 1280")
    for b in range(5):
        r0 = (64*b) // 80; lim = (r0 + 1) * 80 - 64*b
        a(f"v_cmp_le_u32 vcc, {lim}, v1\nv_mov_b32 v2, {r0}\nv_mov_b32 v3, {r0+1}\nv_cndmask_b32 v2, v2, v3, vcc" if lim < 64 else f"v_mov_b32 v2, {r0}")
        a(f"v_mul_u32_u24 v3, 80, v2\nv_sub_u32 v3, v1, v3\nv_add_u32 v3, {64*b}, v3")
        a(f"v_lshlrev_b32 v{vS}, 1, v2\nv_xor_b32 v3, v3, v{vS}\nv_mul_u32_u24 v2, 1280, v2\nv_lshl_add_u32 v{vD+b}, v3, 4, v2")
        a(f"v_xor_b32 v3, 8, v3\nv_lshl_add_u32 v{vD+5+b}, v3, 4, v2")
    a(f"s_mul_i32 s{sM}, s{sWave}, 20480")
    a(f"v_and_b32 v2, 15, v1\nv_mul_u32_u24 v{vS}, 1280, v2\nv_add_u32 v{vS}, s{sM}, v{vS}")
    a(f"v_and_b32 v2, 3, v1\nv_bfe_u32 v3, v1, 3, 1\nv_lshl_add_u32 v2, v3, 2, v2\nv_lshlrev_b32 v2, 1, v2\nv_lshrrev_b32 v3, 4, v1\nv_xor_b32 v2, v2, v3\nv_lshlrev_b32 v2, 4, v2")
    for m in range(4): a(f"v_xor_b32 v3, {64*m}, v2\nv_add_u32 v{vG+m}, v3, v{vS}")
    a("s_waitcnt vmcnt(0)")
    ts(a)
    for aa in range(4):
        for b in range(5):
            a(f"s_add_u32 m0, s{sM}, {(5*aa+b)*1024}\ns_nop 0")
            a.vm(f"buffer_load_dwordx4 v{vD+5*(aa>>1)+b}, {sr(dU,4)}, s{sO} offen lds", "x")
        if aa < 3: a(f"s_add_u32 s{sO}, s{sO}, 5120")
    a(f"v_lshrrev_b32 v2, 4, v1\nv_lshlrev_b32 v2, 4, v2")
    for s in range(20): a.vm(f"buffer_load_dwordx4 {vr(GW+4*s,4)}, v2, {sr(dTmp,4)}, 0 offen offset:{64*s}", "gw")
    nonce_load(a, vNo, vZ)
    a.wait(vm="x")
    ts(a)
    for s in range(20): a.ds(f"ds_read_b128 {vr(XF+4*s,4)}, v{vG+(s&3)} offset:{256*(s>>2)}", ("g", s))
    a.wait(vm="gw")
    for s in range(20):
        a.wait(lg=("g", s))
        a(f"v_mfma_f32_16x16x32_bf16 {vr(ACC,4)}, {vr(GW+4*s,4)}, {vr(XF+4*s,4)}, {'0' if s == 0 else vr(ACC,4)}")
    a("s_nop 7")
    a(f"v_cvt_pk_bf16_f32 v2, v{ACC}, v{ACC}\nv_lshlrev_b32 v2, 16, v2\nv_mul_f32 v2, 0xbfb8aa3b, v2\nv_exp_f32 v2, v2\ns_nop 0\nv_add_f32 v2, 1.0, v2\nv_rcp_f32 v2, v2\ns_nop 0")
    a(f"v_cvt_pk_bf16_f32 v2, v2, v2\nv_lshlrev_b32 v2, 16, v2")
    a(f"s_lshl_b32 s{sO}, s{sT}, 2\ns_add_u32 s{sHf}, s{sO}, {FG}\ns_add_u32 s{sO}, s{sO}, {G_OFF}\nv_lshlrev_b32 v3, 2, v1")
    flag_load(a, vFl, vFa, "fr")
    nonce_get(a, vNo, vZ)
    g2_setup(a)
    a(f"s_mov_b32 s{sFrOk}, 0\ns_waitcnt vmcnt(0)\ns_mov_b64 exec, 0xffff")
    a(f"buffer_store_dword v2, v3, {sr(dWs,4)}, s{sO} offen {SC1}")
    a("s_mov_b64 exec, -1")
    ts(a)

ROWB = 272; SCR = 32*ROWB
KS = 90112; U_A = 106496; KC_A = U_A + 2048; PB = KS + 4*SCR
XR = 220
sD, sDt, sDsk, sScr, sSh = 81, 82, 83, 84, 85
PR = 24; KA = 124
def kgen_loads(a):
    a(f"s_lshl_b32 s{sD}, s2, 2\ns_add_u32 s{sD}, s{sD}, s{sWave}\ns_lshl_b32 s10, s{sD}, 8\nv_lshl_add_u32 v2, v1, 2, s10")
    for k, p in enumerate((pAre, pAim, pBre, pBim, pCre, pCim)):
        a(f"global_load_dword v{PR+k}, v2, {sr(p,2)}")
    a(f"s_lshr_b32 s10, s{sD}, 1\ns_lshl_b32 s10, s10, 2")
    a(f"s_load_dword s{sDt}, {sr(pLdt,2)}, s10\ns_load_dword s{sDsk}, {sr(pDsk,2)}, s10")
def kgen(a, nyoung):
    vWr, vRdX, vRdY2, vDt, WA = 30, 31, 32, 33, 34
    Z = 44; ZC = 76; Z16 = 92; X = 94; O = 98; T = 114; FRG = 136; un = 200
    lq0 = a.lq; a.lq = []
    a(f"s_xor_b32 s10, s{sHalf}, 1\ns_lshl_b32 s10, s10, 2\ns_add_u32 s10, s10, s{sWave}\ns_mul_i32 s{sScr}, s10, {SCR}\ns_add_u32 s{sScr}, s{sScr}, {KS}\ns_lshl_b32 s{sSh}, s{sHalf}, 4")
    a(f"v_lshl_add_u32 v{vWr}, v1, 2, s{sScr}")
    for m in range(8): a(f"v_add_u32 v{WA+m}, {4*ROWB*m}, v{vWr}")
    a(f"v_and_b32 v2, 15, v1\nv_lshrrev_b32 v3, 4, v1\nv_lshl_add_u32 v3, v3, 4, s{sScr}")
    a(f"v_mul_u32_u24 v{vRdX}, {ROWB}, v2\nv_add_u32 v{vRdX}, v{vRdX}, v3")
    a(f"v_lshrrev_b32 v42, 2, v2\nv_and_b32 v43, 1, v2\nv_lshl_add_u32 v42, v42, 1, v43\nv_add_u32 v42, 16, v42\nv_and_b32 v43, 2, v2\nv_cmp_eq_u32 vcc, 0, v43\nv_mov_b32 v43, 24\ns_nop 0\nv_cndmask_b32 v42, v43, v42, vcc")
    a(f"v_mul_u32_u24 v{vRdY2}, {ROWB}, v42\nv_add_u32 v{vRdY2}, v{vRdY2}, v3")
    a("s_waitcnt lgkmcnt(0)")
    a(f"s_bitcmp1_b32 s{sD}, 0\ns_cselect_b32 s10, 0, 16\ns_lshl_b32 s{sDt}, s{sDt}, s10\ns_and_b32 s{sDt}, s{sDt}, 0xffff0000\ns_lshl_b32 s{sDsk}, s{sDsk}, s10\ns_lshr_b32 s{sDsk}, s{sDsk}, 16")
    a(f"v_mov_b32 v2, s{sDt}\nv_mul_f32 v3, 0x3fb8aa3b, v2\ns_mov_b32 s10, 0x3fb8aa3b\nv_fma_f32 v42, v2, s10, -v3\nv_fmac_f32 v42, 0x32a57060, v2")
    a(f"v_exp_f32 v3, v3\nv_mul_f32 v42, 0x3f317218, v42\nv_fma_f32 v3, v3, v42, v3\nv_cvt_pk_bf16_f32 v3, v3, v3\nv_lshlrev_b32 v{vDt}, 16, v3")
    if not OPT["late"]: a(f"s_cmp_eq_u32 s{sHalf}, 0\ns_cbranch_scc1 L_kw\ns_waitcnt vmcnt({min(2, OPT['l2t'])})\nL_kw:\ns_waitcnt vmcnt({nyoung})")
    ts(a, 20)
    def cmul(D, A_, B_):
        return [f"v_pk_mul_f32 {vr(D,2)}, {vr(A_,2)}, {vr(B_,2)} op_sel:[0,0] op_sel_hi:[1,0]",
                f"v_pk_fma_f32 {vr(D,2)}, {vr(A_,2)}, {vr(B_,2)}, {vr(D,2)} op_sel:[1,1,0] op_sel_hi:[0,1,1] neg_lo:[0,1,0]"]
    class Ch:
        def __init__(s_, ch): s_.ch = ch; s_.n = 0; s_.pend = None; s_.L = []
        def mul(s_, D, A_, B_): s_.L += cmul(D, A_, B_)
        def put(s_, row, S, const=None):
            o = O + 4*s_.ch + (s_.n % 4); s_.n += 1
            s_.L.append(f"v_cvt_pk_bf16_f32 v{o}, v{S}, v{S+1}" if const is None else f"v_mov_b32 v{o}, {const}")
            if s_.pend is not None and s_.pend[0] // 4 == row // 4:
                r0, o0 = s_.pend; s_.pend = None
                s_.L.append(("ds", f"ds_write2_b32 v{WA+row//4}, v{o0}, v{o} offset0:{(r0%4)*ROWB//4} offset1:{(row%4)*ROWB//4}"))
            else:
                s_.flush(); s_.pend = (row, o)
        def flush(s_):
            if s_.pend is not None:
                r0, o0 = s_.pend; s_.pend = None
                s_.L.append(("ds", f"ds_write_b32 v{vWr}, v{o0} offset:{r0*ROWB}"))
    def emit(seq):
        for x in seq:
            if isinstance(x, tuple): a.ds(x[1], "w")
            else: a(x)
    def interleave(*chains):
        out = []; n = max(len(c) for c in chains)
        for i in range(n):
            for c in chains:
                if i < len(c): out.append(c[i])
        return out
    for k in range(6): a(f"v_lshlrev_b32 v{un+k}, s{sSh}, v{PR+k}")
    for k in range(6): a(f"v_and_b32 v{un+k}, 0xffff0000, v{un+k}")
    ar_, ai_, br_, bi_, cr_, ci_ = range(un, un+6)
    a(f"v_mul_f32 v{ar_}, v{vDt}, v{ar_}\nv_mul_f32 v{ai_}, v{vDt}, v{ai_}\nv_mul_f32 v{br_}, v{vDt}, v{br_}\nv_mul_f32 v{bi_}, v{vDt}, v{bi_}")
    a(f"v_mul_f32 v{ar_}, 0x3fb8aa3b, v{ar_}\nv_mul_f32 v{ai_}, 0.15915494, v{ai_}")
    m = un + 6
    for k, lit in enumerate(("1.0", "0x41800000", "0x43800000")):
        a(f"v_mul_f32 v{m+k}, {lit}, v{ar_}\nv_mul_f32 v{m+3+k}, {lit}, v{ai_}")
    for k in range(3): a(f"v_fract_f32 v{m+3+k}, v{m+3+k}")
    for k in range(3): a(f"v_exp_f32 v{m+k}, v{m+k}")
    for k in range(3): a(f"v_cos_f32 v{m+6+k}, v{m+3+k}\nv_sin_f32 v{m+9+k}, v{m+3+k}")
    emit(cmul(X, cr_, br_))
    a(f"v_mul_f32 v{Z+2}, v{m}, v{m+6}\nv_mul_f32 v{Z+3}, v{m}, v{m+9}")
    a(f"v_mul_f32 v{Z16}, v{m+1}, v{m+7}\nv_mul_f32 v{Z16+1}, v{m+1}, -v{m+10}")
    a(f"v_mul_f32 v{ZC}, v{m+2}, v{m+8}\nv_mul_f32 v{ZC+1}, v{m+2}, v{m+11}")
    a(f"v_xor_b32 v{X+1}, 0x80000000, v{X+1}")
    cX, cZ, cC = Ch(0), Ch(1), Ch(2)
    cX.put(0, X)
    for i in range(1, 16):
        cX.mul(X + 2*(i & 1), X + 2*((i-1) & 1), Z16); cX.put(i, X + 2*(i & 1))
    cZ.put(16, 0, const="0x3f80"); cZ.put(17, Z+2)
    for f in range(2, 16):
        cZ.mul(Z + 2*f, Z + 2*(f//2), Z + 2*(f - f//2)); cZ.put(16 + f, Z + 2*f)
    for c in range(2, 9): cC.mul(ZC + 2*(c-1), ZC + 2*(c//2 - 1), ZC + 2*(c - c//2 - 1))
    emit(interleave(cX.L, cZ.L, cC.L))
    for s in range(4):
        a.ds(f"ds_read_b128 {vr(FRG+16*s,4)}, v{vRdX} offset:{64*s}", ("k", s))
        a.ds(f"ds_read_b128 {vr(FRG+16*s+4,4)}, v{vRdX} offset:{64*s+16*ROWB}", ("k", s))
    groups = [[(0, 1, 0), (1, 1, 2), (2, 1, 4), (3, 1, 6), (16, 4, 0), (17, 4, 8), (24, 8, 0)],
              [(4, 1, 8), (5, 1, 10), (6, 1, 12), (7, 1, 14), (18, 5, 0), (19, 5, 8)],
              [(8, 2, 0), (9, 2, 4), (10, 2, 8), (11, 2, 12), (20, 6, 0), (21, 6, 8)],
              [(12, 3, 0), (13, 3, 4), (14, 3, 8), (15, 3, 12), (22, 7, 0), (23, 7, 8)]]
    chains = []
    for k, g in enumerate(groups):
        c_ = Ch(k); d = T + 2*k
        for row, c, f in g:
            if f == 0: c_.put(row, ZC + 2*(c-1))
            else: c_.mul(d, ZC + 2*(c-1), Z + 2*f); c_.put(row, d)
        c_.flush(); chains.append(c_.L)
    emit(interleave(*chains))
    for s in range(4):
        a.ds(f"ds_read_b128 {vr(FRG+16*s+8,4)}, v{vRdX} offset:{64*s}", ("k2", s))
        a.ds(f"ds_read_b128 {vr(FRG+16*s+12,4)}, v{vRdY2} offset:{64*s}", ("k2", s))
    a.wait(lg=("k", 3))
    for s in range(4): a(f"v_mfma_f32_16x16x32_bf16 {vr(KA,4)}, {vr(FRG+16*s+4,4)}, {vr(FRG+16*s,4)}, {'0' if s == 0 else vr(KA,4)}")
    for s in range(4):
        a.wait(lg=("k2", s))
        for t in (1, 2): a(f"v_mfma_f32_16x16x32_bf16 {vr(KA+4*t,4)}, {vr(FRG+16*s+4+4*t,4)}, {vr(FRG+16*s,4)}, {'0' if s == 0 else vr(KA+4*t,4)}")
    ts(a, 21)
    a.lq = lq0
def kgen_partial(a):
    a(f"v_lshl_add_u32 v2, v1, 4, s{sScr}\ns_nop 6")
    for t in range(3): a.ds(f"ds_write_b128 v2, {vr(KA+4*t,4)} offset:{1024*t}", "w")

sUk, sUc, sFp = 12, 13, 100
def l2touch(a):
    first = 220 - 80*OPT["l2t"] if OPT["l2t"] < 3 else 22
    for rnd in range(OPT["l2t"]):
        a(f"s_lshr_b32 s8, s2, 3\ns_lshl_b32 s8, s8, 2\ns_add_u32 s8, s8, s{sWave}\ns_add_u32 s8, s8, {first+80*rnd}")
        if first + 80*rnd + 79 >= 220: a(f"s_cmp_ge_u32 s8, 220\ns_cbranch_scc1 L_l2e")
        a(f"s_mul_i32 s9, s8, 2979\ns_lshr_b32 s9, s9, 16\ns_mul_i32 s10, s9, 22\ns_sub_u32 s8, s8, s10")
        a(f"s_and_b32 s10, s2, 3\ns_lshl_b32 s10, s10, 3\ns_add_u32 s10, s10, s8\ns_mul_i32 s10, s10, {64*1280}\ns_lshl_b32 s11, s9, 7\ns_add_u32 s10, s10, s11")
        a(f"s_bfe_u32 s11, s2, 0x10002\ns_sub_u32 s14, 13, s11\ns_sub_u32 s15, s8, 8\ns_min_u32 s14, s14, s15\ns_lshl_b32 s14, s14, 7\ns_mul_i32 s11, s11, 1792\ns_add_u32 s11, s11, s14\ns_mul_i32 s14, s9, {64*3456}\ns_add_u32 s11, s11, s14")
        a(f"s_cmp_lt_u32 s8, 8\ns_cselect_b32 s10, s10, s11\ns_movk_i32 s11, 3456\ns_cselect_b32 s11, 1280, s11\ns_cselect_b64 s[14:15], {sr(pU,2)}, {sr(pW1,2)}")
        a(f"v_mul_u32_u24 v3, s11, v1\nv_add_u32 v3, s10, v3")
        a(f"global_load_dword v{250+rnd}, v3, s[14:15]")
    a("L_l2e:")
def xunit_store(a):
    RL = 24
    a(f"v_bfe_u32 v2, v1, 2, 2\nv_sub_u32 v3, 3, v2\nv_lshrrev_b32 v41, 4, v1\nv_lshl_add_u32 v3, v41, 3, v3")
    a(f"v_bfe_u32 v42, v3, 1, 3\nv_bfe_u32 v43, v1, 1, 1\nv_xor_b32 v42, v42, v43\nv_lshlrev_b32 v42, 4, v42\nv_lshl_add_u32 v42, v3, 7, v42\nv_and_b32 v43, 1, v1\nv_lshl_add_u32 v42, v43, 3, v42")
    for m in range(4): a(f"v_xor_b32 v{44+m}, {32*m}, v42\nv_add_u32 v{44+m}, s{sMx}, v{44+m}")
    a.wait(vm=("x", 0))
    for t in range(4):
        a.ds(f"ds_read_b64_tr_b16 {vr(RL+4*t,2)}, v{44+(t^1)} offset:512", ("rl", t))
        a.ds(f"ds_read_b64_tr_b16 {vr(RL+4*t+2,2)}, v{44+t}", ("rl", t))
    a(f"v_and_b32 v42, 3, v1\nv_xor_b32 v42, s{sWave}, v42\nv_lshlrev_b32 v42, 4, v42\nv_lshl_add_u32 v42, v41, 6, v42\nv_lshl_add_u32 v43, v2, 14, v42")
    a(f"s_lshl_b32 s{sUk}, s{sRb}, 2\ns_add_u32 s{sUk}, s{sUk}, s{sWave}\ns_lshl_b32 s10, s{sK0}, 18\ns_lshl_b32 s11, s{sUk}, 8\ns_add_u32 s10, s10, s11\ns_add_u32 s10, s10, {UT_OFF}")
    for t in range(4):
        a.wait(lg=("rl", t))
        a(f"buffer_store_dwordx4 {vr(RL+4*t,4)}, v43, {sr(dWs,4)}, s10 offen {SC1}")
        if t < 3: a(f"s_add_u32 s10, s10, 0x10000")
    a(f"s_lshl_b32 s{sFp}, s{sK0}, 6\ns_add_u32 s{sFp}, s{sFp}, s{sUk}\ns_lshl_b32 s{sFp}, s{sFp}, 6\ns_add_u32 s{sFp}, s{sFp}, {FP}")
def ssm(a):
    a.reset_q()
    sT, sP = 80, 5
    mOdd, m3, mN0 = 76, 78, 12
    cv = lambda d, x, y: a(f"v_cvt_pk_bf16_f32 v{d}, v{x}, v{y}")
    E = 24; Q = 48; RL = 88; PT = 136
    vA = 184; vB = 192; DK = 196
    a(f"s_setprio {OPT['pS0']}")
    a(f"s_mul_i32 s{sP}, s{sWave}, {SCR}\ns_add_u32 s{sP}, s{sP}, {PB}\ns_mul_i32 s{sT}, s{sWave}, 2816\ns_add_u32 s{sT}, s{sT}, {KC_A}")
    a(f"v_mov_b32 v{vZ}, 0\ns_lshl_b32 s10, s{sWave}, 2\ns_add_u32 s10, s10, {FLG+16}\nv_mov_b32 v12, s10\nds_write_b32 v12, v{vZ}")
    a(f"v_lshlrev_b32 v{vHl}, 4, v1\nv_lshl_add_u32 v14, v1, 4, s{sP}\ns_waitcnt lgkmcnt(0)\ns_barrier")
    n0 = len(a.lines)
    nb = [1]
    def B(n=1):
        for _ in range(n): a("s_barrier")
        nb[0] += n
    if OPT["x_s"] == 1:
        B(20); return
    if OPT["x_s"] == 2: return
    for t in range(3): a.ds(f"ds_read_b128 {vr(PT+4*t,4)}, v14 offset:{1024*t}", "pt")
    a(f"s_mov_b32 s{mOdd}, 0xaaaaaaaa\ns_mov_b32 s{mOdd+1}, 0xaaaaaaaa\ns_mov_b32 s{m3}, 0x88888888\ns_mov_b32 s{m3+1}, 0x88888888\ns_mov_b32 s{mN0}, 0xeeeeeeee\ns_mov_b32 s{mN0+1}, 0xeeeeeeee")
    a(f"v_and_b32 v2, 15, v1\nv_lshrrev_b32 v3, 4, v1")
    a(f"v_lshlrev_b32 v15, 6, v2\nv_lshl_add_u32 v15, v3, 4, v15\nv_add_u32 v15, s{sT}, v15")
    B()
    nonce_load(a, vNo, vZ)
    a(f"v_lshlrev_b32 v16, 5, v2\nv_lshl_add_u32 v16, v3, 4, v16\nv_lshlrev_b32 v17, 4, v2\nv_lshl_add_u32 v17, v3, 8, v17\nv_cmp_gt_u32 vcc, 32, v1\ns_nop 1\nv_cndmask_b32 v16, v17, v16, vcc\nv_add_u32 v16, s{sT}, v16")
    a(f"v_lshlrev_b32 v17, 3, v2\nv_lshl_add_u32 v17, v3, 7, v17\nv_add_u32 v17, s{sT}, v17")
    a(f"v_lshl_add_u32 v18, v1, 2, s{sT}")
    B()
    a.wait(lg="pt")
    for r in range(11): a(f"v_add_f32 v{KA+r}, v{KA+r}, v{PT+r}")
    a.ds(f"ds_write_b128 v15, {vr(KA,4)}", "w")
    a.ds(f"ds_write_b128 v16, {vr(KA+4,4)} offset:1024", "w")
    a.ds(f"ds_write_b64 v17, {vr(KA+8,2)} offset:2048", "w")
    a.ds(f"ds_write_b32 v18, v{KA+10} offset:2560", "w")
    B()
    a(f"v_lshl_add_u32 v19, v1, 4, s{sT}\nv_lshl_add_u32 v20, v1, 3, s{sT}")
    a(f"v_lshrrev_b32 v21, 1, v1\nv_lshl_add_u32 v21, v21, 2, s{sT}\nv_add_u32 v21, 2048, v21\nv_add_u32 v22, 1536, v18\nv_mov_b32 v23, s{sT}")
    a.ds(f"ds_read_b128 {vr(E,4)}, v19", "e"); a.ds(f"ds_read_b32 v{E+4}, v19 offset:16", "e"); a.ds(f"ds_read_b32 v{E+5}, v23", "e")
    a.ds(f"ds_read_b64 {vr(E+6,2)}, v20 offset:1024", "e"); a.ds(f"ds_read_b32 v{E+8}, v20 offset:1032", "e")
    B()
    for w in (2, 3): a.ds(f"ds_read2_b32 {vr(E+10+2*(w-2),2)}, v22 offset0:{64*(w-2)} offset1:{64*(w-2)+1}", "e2")
    for w in range(4, 8): a.ds(f"ds_read2_b32 {vr(E+14+2*(w-4),2)}, v21 offset0:{32*(w-4)} offset1:{32*(w-4)+1}", "e2")
    B()
    nonce_get(a, vNo, vZ)
    a(f"v_and_b32 v2, 15, v1\nv_lshrrev_b32 v3, 4, v1\nv_lshlrev_b32 v21, 3, v3\nv_sub_u32 v21, v2, v21")
    a(f"v_lshl_add_u32 v22, v21, 2, s{sP}")
    for aa in range(8): a(f"v_add_u32 v{vA+aa}, {4*(25 + 256*aa)}, v22")
    a(f"v_lshl_add_u32 v22, v2, 1, v3")
    for m in range(4):
        if m % 2 == 0: B()
        a(f"v_add_u32 v23, {14 - 4*m}, v22\nv_lshrrev_b32 v20, 2, v23\nv_xor_b32 v20, s{sWave}, v20\nv_and_b32 v20, 3, v20\nv_lshlrev_b32 v20, 4, v20\nv_lshl_add_u32 v20, v23, 6, v20\nv_add_u32 v{vB+m}, {U_A}, v20")
    B()
    a(f"v_sub_u32 v21, -9, v21\nv_and_b32 v22, 1, v21\nv_lshlrev_b32 v22, 4, v22\nv_mov_b32 v23, s{sDsk}\nv_lshlrev_b32 v22, v22, v23\nv_ashrrev_i32 v21, 1, v21")
    for p in range(4): a(f"v_cmp_eq_u32 vcc, {p}, v21\ns_nop 1\nv_cndmask_b32 v{DK+p}, 0, v22, vcc")
    B()
    a(f"s_lshr_b32 s9, s2, 4\ns_lshl_b32 s9, s9, 2\ns_add_u32 s9, s9, s{sWave}\ns_lshl_b32 s9, s9, 10\ns_add_u32 s9, s9, {FP}\nv_and_b32 v2, 15, v1\nv_lshl_add_u32 v{vFa}, v2, 6, s9")
    a(f"s_lshl_b32 s9, s2, 2\ns_add_u32 s9, s9, s{sWave}\ns_lshl_b32 s9, s9, 12\ns_add_u32 s9, s9, {UT_OFF}\ns_lshl_b32 s10, s{sWave}, 12\ns_add_u32 m0, s10, {U_A + 2048}\nv_mov_b32 v13, {FLG}")
    a.wait(lg="e2")
    for e in range(4): cv(Q+e, E+e, E+e+1)
    cv(Q+4, E+6, E+6); cv(Q+5, E+6, E+7); cv(Q+6, E+7, E+8); cv(Q+7, E+8, E+8)
    a(f"v_mov_b32 v{Q+32}, 0\nv_mov_b32 v{Q+33}, 0\nv_mov_b32 v{Q+34}, 0\nv_cvt_pk_bf16_f32 v{Q+35}, 0, v{E+5}\nv_cndmask_b32 v{Q+35}, 0, v{Q+35}, {sr(m3,2)}")
    for w in range(2, 8):
        if w % 2 == 0: B()
        if nb[0] - 1 == OPT["s_pp"] and w % 2 == 0: flag_load(a, vFl, vFa, "fp")
        q = Q+4*w
        if w < 4:
            al = E+10+2*(w-2); be = al+1
            a(f"v_cndmask_b32 v2, v{al}, v{be}, {sr(mOdd,2)}")
            cv(q, al, al); cv(q+3, be, be); cv(q+1, al, 2); cv(q+2, 2, be)
        else:
            al = E+14+2*(w-4); be = al+1
            a(f"v_cndmask_b32 v2, v{al}, v{be}, {sr(m3,2)}\nv_cndmask_b32 v3, v{al}, v{be}, {sr(mOdd,2)}\nv_cndmask_b32 v15, v{al}, v{be}, {sr(mN0,2)}")
            cv(q, 2, 3); cv(q+1, 3, 3); cv(q+2, 3, 3); cv(q+3, 3, 15)
    if OPT["s_pp"] > 12:
        B(OPT["s_pp"] - 12); flag_load(a, vFl, vFa, "fp")
    B(OPT["s_pc"] + 1 - nb[0])
    def udma():
        for e in range(4): a(f"buffer_load_dwordx4 v{vHl}, {sr(dWs,4)}, s9 offen offset:{1024*e} {SC1} lds")
    a.wait(vm="fp")
    a(f"v_cmp_eq_u64 vcc, {sr(sN,2)}, {vr(vFl,2)}\ns_mov_b32 s15, 1\ns_cmp_eq_u64 vcc, -1\ns_cbranch_scc0 L_late\ns_mov_b32 s15, 0")
    udma()
    a("L_late:")
    B(OPT["s_pw"] + 1 - nb[0])
    W = [f"ds_write_b128 v14, {vr(Q+4*w,4)} offset:{64+1024*w}" for w in range(8)]
    W.append(f"s_mov_b64 exec, 0xf\nds_write_b128 v14, {vr(Q+32,4)}\ns_mov_b64 exec, -1\ns_lshl_b32 s10, s{sWave}, 9\ns_add_u32 s10, s10, {U_A}\nv_lshl_add_u32 v2, v1, 3, s10\nds_write_b64 v2, {vr(Q+32,2)}")
    while W:
        for _ in range(OPT["s_pn"]):
            if W: a(W.pop(0))
        if nb[0] < 21: B()
    B(21 - nb[0])
    if OPT["wrap"]: a.lines[n0:] = wrap_prio(a.lines[n0:], OPT["pS0"])
    a(f"s_setprio {OPT['pS1']}\ns_cmp_eq_u32 s15, 0\ns_cbranch_scc1 L_uok")
    flag_check(a, vFl, vFa, "none")
    udma()
    a("L_uok:")
    ts(a)
    a(f"v_mov_b32 v2, 1\ns_waitcnt vmcnt(0)\nds_write_b32 v12, v2")
    a(f"L_su:\nds_read_b128 v[16:19], v13 offset:16\ns_waitcnt lgkmcnt(0)\nv_min3_u32 v2, v16, v17, v18\nv_min_u32 v2, v2, v19\nv_cmp_ne_u32 vcc, 0, v2\ns_cbranch_vccz L_su")
    a.reset_q()
    ts(a)
    AC = 24; FB = 56
    def rdA(rho, aa):
        d = FB + 64*(rho & 1) + 4*aa
        return [(f"ds_read2_b32 {vr(d,2)}, v{vA+aa} offset0:{32*rho} offset1:{32*rho+2}", ("c", rho, aa)),
                (f"ds_read2_b32 {vr(d+2,2)}, v{vA+aa} offset0:{32*rho+4} offset1:{32*rho+6}", ("c", rho, aa))]
    def rdB(rho, b):
        d = FB + 64*(rho & 1) + 32 + 4*b
        return [(f"ds_read_b128 {vr(d,4)}, v{vB+(rho&3)} offset:{2048*b + (1024 if rho < 4 else 0)}", ("c", rho, b))]
    def rds(rho):
        L = []
        for k in range(8): L += rdA(rho, k) + rdB(rho, k)
        return L
    for x in rds(0): a.ds(*x)
    first = [True]*8
    for rho in range(8):
        nxt = rds(rho + 1) if rho < 7 else []
        base = FB + 64*(rho & 1)
        ms = []
        for k in range(8):
            grp = [(aa, b) for aa in range(k+1) for b in range(k+1) if max(aa, b) == k and aa + b < 8]
            if rho == 0: grp.append((-1, k))
            ms.append(grp)
        cnt = 0
        for k in range(8):
            a.wait(lg=("c", rho, k))
            for aa, b in ms[k]:
                Tt = b if aa < 0 else aa + b
                A_ = vr(DK, 4) if aa < 0 else vr(base + 4*aa, 4)
                a(f"v_mfma_f32_16x16x32_bf16 {vr(AC+4*Tt,4)}, {A_}, {vr(base+32+4*b,4)}, {'0' if first[Tt] else vr(AC+4*Tt,4)}")
                first[Tt] = False
                cnt += 1
                if cnt > 4 and nxt and rho > 0 or (rho == 0 and k >= 3 and nxt): a.ds(*nxt.pop(0))
        for x in nxt: a.ds(*x)
    ts(a)
    a("s_setprio 3")
    a(f"v_and_b32 v2, 15, v1\nv_lshlrev_b32 v2, 5, v2\nv_bfe_u32 v3, v1, 4, 1\nv_lshl_add_u32 v2, v3, 9, v2\nv_lshrrev_b32 v3, 5, v1\nv_lshl_add_u32 v2, v3, 4, v2")
    a(f"s_lshl_b32 s9, s{sD}, 12\ns_add_u32 s9, s9, {A_OFF}\ns_lshl_b32 s10, s{sD}, 6\ns_add_u32 s10, s10, {FA}")
    for Tp in range(4):
        d = FB + 4*Tp; c = AC + 8*Tp
        cv(d, c, c+1); cv(d+1, c+2, c+3); cv(d+2, c+4, c+5); cv(d+3, c+6, c+7)
    for Tp in range(4):
        d = FB + 4*Tp
        if Tp == 3: a("s_nop 0")
        a(f"v_permlane16_swap_b32 v{d}, v{d+2}\nv_permlane16_swap_b32 v{d+1}, v{d+3}")
        a(f"buffer_store_dwordx4 {vr(d,4)}, v2, {sr(dWs,4)}, s9 offen offset:{1024*Tp} {SC1}")
    ts(a)
    a("s_waitcnt vmcnt(0)")
    set_flag(a, 10, vZ, vNo)
    ts(a)

sWb, sHb, sO, sM2, sT2, sQ, sRot, sCnt, sO2 = 81, 82, 83, 84, 85, 15, 94, 95, 76
def g2_setup(a):
    a(f"s_mul_i32 s{sWb}, s{sDb}, 54\ns_add_u32 s{sWb}, s{sWb}, s{sK}\ns_mul_i32 s{sWb}, s{sWb}, 5120\ns_add_u32 s{sWb}, s{sWb}, {W2P_OFF}")
    a(f"s_mul_i32 s{sM2}, s{sWave}, 20480\ns_cmp_ge_u32 s{sWave}, 2\ns_cselect_b32 s{sCnt}, 13, 14")
    a(f"s_mul_i32 s{sRot}, s{sDb}, 13\ns_lshr_b32 s{sRot}, s{sRot}, 3" if OPT["rot"] else f"s_mov_b32 s{sRot}, 0")
    if OPT["rotb"]: a(f"s_and_b32 s{sT2}, s{sTb}, 3\ns_mul_i32 s{sT2}, s{sT2}, {OPT['rotb']}\ns_add_u32 s{sRot}, s{sRot}, s{sT2}\ns_cmp_ge_u32 s{sRot}, s{sCnt}\ns_cselect_b32 s{sT2}, s{sCnt}, 0\ns_sub_u32 s{sRot}, s{sRot}, s{sT2}")
def koff(j, stride, base, dst):
    return (f"s_add_u32 s{sT2}, s{sRot}, {j}\ns_cmp_ge_u32 s{sT2}, s{sCnt}\ns_cselect_b32 s{sQ}, s{sCnt}, 0\ns_sub_u32 s{sT2}, s{sT2}, s{sQ}\n"
            f"s_mul_i32 s{sT2}, s{sT2}, {stride}\ns_add_u32 s{dst}, s{sT2}, s{base}")
def wreg(j):
    L = []
    for t in range(5):
        pre = koff(j, 5120, sWb, sO) if t == 0 else (f"s_add_u32 s{sO}, s{sO}, 4096" if t == 4 else None)
        L.append((pre, f"buffer_load_dwordx4 {vr(WF+20*(j%5)+4*t,4)}, v{vHl}, {sr(dWs,4)}, s{sO} offen offset:{1024*(t%4)} {SC1}", ("w2", j)))
    return L
def g2_wprefetch():
    L = []
    for j in range(5): L += wreg(j)
    return L
def gemm2(a):
    srd(a, dOut, pOut, 2048*1280)
    sM, sT = sM2, sT2
    ACC = 12
    vH13, vLr = 0, 3
    NK = 14
    def em(x):
        if x[0]: a(x[0])
        a.vm(x[1], x[2])
    full = g2_wprefetch()
    ndone = len(full) - len(PFW_LEFT) if OPT["wpf"] else 0
    lok = a.label("L_frok")
    a(f"s_cmp_eq_u32 s{sFrOk}, 1\ns_cbranch_scc1 {lok}")
    q = list(a.vq)
    a("s_waitcnt vmcnt(0)"); set_flag(a, sHf, vZ, vNo)
    flag_check(a, vFl, vFa, "none")
    a(f"s_setprio {OPT['pG2']}")
    for x in full[:ndone]: em(x)
    a.vq = q
    a(f"{lok}:\ns_setprio {OPT['pG2']}")
    ts(a, 8)
    ldsj = [6, 8, 10, 12] if OPT["alt"] else [10, 11, 12, 13]
    def wlds(j):
        L = []; sl = ldsj.index(j) * 5120
        for t in range(5):
            pre = None
            if t == 0: pre = f"s_add_u32 m0, s{sM}, {sl}\n" + koff(j, 5120, sWb, sO)
            if t == 4: pre = f"s_add_u32 m0, s{sM}, {sl+4096}\ns_add_u32 s{sO}, s{sO}, 4096"
            L.append((pre, f"buffer_load_dwordx4 v{vHl}, {sr(dWs,4)}, s{sO} offen offset:{1024*(t%4)} {SC1} lds", ("wl", j)))
        return L
    PF = full[ndone:]
    for j in ldsj: PF += wlds(j)
    for x in PF[:OPT["w_a"]]: em(x)
    a(f"s_add_u32 s10, s{sCnt}, s{sK}\ns_sub_u32 s10, s10, 1\ns_lshr_b32 s10, s10, 1\ns_lshr_b32 s11, s{sK}, 1\nv_add_u32 v2, s11, v1\nv_min_u32 v2, s10, v2")
    a(f"s_lshl_b32 s10, s{sTb}, 11\ns_add_u32 s10, s10, {FH}\nv_lshl_add_u32 v{vFa}, v2, 6, s10")
    a(f"s_mul_i32 s{sHb}, s{sTb}, 54\ns_add_u32 s{sHb}, s{sHb}, s{sK}\ns_lshl_b32 s{sHb}, s{sHb}, 12")
    a(f"s_cmp_ge_u32 s{sWave}, 2\ns_cselect_b32 s10, 0x7f000000, 0\nv_add_u32 v{vH13}, s10, v{vHl}\nv_add_u32 v{vLr}, s{sM}, v{vHl}")
    a("s_setprio 3")
    a.wait(vm="hst")
    set_flag(a, sHf, vZ, vNo, "hf")
    a(f"s_setprio {OPT['pG2']}")
    ts(a)
    for x in PF[OPT["w_a"]:OPT["w_a"]+OPT["w_b"]]: em(x)
    flag_load(a, vFl, vFa, "fh")
    for x in PF[OPT["w_a"]+OPT["w_b"]:]: em(x)
    a.wait(vm="fh")
    ts(a)
    flag_check(a, vFl, vFa, "fh")
    ts(a)
    def hld(j):
        return [(koff(j, 4096, sHb, sO2) if tt == 0 else None,
                 f"buffer_load_dwordx4 {vr(HF+16*(j%4)+4*tt,4)}, v{vH13 if j == 13 else vHl}, {sr(dWs,4)}, s{sO2} offen offset:{1024*tt} {SC1}", ("h", j)) for tt in range(4)]
    for j in range(4):
        for x in hld(j): em(x)
    a(f"s_mul_i32 s12, s{sDb}, 80\ns_mul_i32 s10, s{sWave}, 20\ns_add_u32 s12, s12, s10\ns_lshl_b32 s10, s12, 6\ns_add_u32 s10, s10, {FA}\nv_lshl_add_u32 v{vFa}, v1, 6, s10")
    a(f"s_lshl_b32 s13, s{sTb}, 2\ns_add_u32 s13, s13, s{sWave}\ns_lshl_b32 s10, s13, 6\ns_add_u32 s10, s10, {FG}")
    a(f"v_cmp_gt_u32 vcc, 20, v1\nv_mov_b32 v2, s10\ns_nop 0\nv_cndmask_b32 v{vFa}, v2, v{vFa}, vcc")
    EP = WF + 80
    for k in range(NK):
        tags = [("h", k), ("w2", k)]
        idx = [max((i for i, t in enumerate(a.vq) if t == tg), default=-1) for tg in tags]
        a.wait(vm=tags[0] if idx[0] >= idx[1] else tags[1], lg=("r", k))
        if k in (0, 5, 10): ts(a)
        Hn = hld(k + 3) if (k >= 1 and k + 3 < NK) else []
        j = k + 5
        Wn = wreg(j) if (j < NK and j not in ldsj) else []
        if j in ldsj: a.wait(vm=("wl", j))
        for t in range(5):
            for tt in range(4):
                c = ACC + 4*(4*t + tt)
                a(f"v_mfma_f32_16x16x32_bf16 {vr(c,4)}, {vr(WF+20*(k%5)+4*t,4)}, {vr(HF+16*(k%4)+4*tt,4)}, {'0' if k == 0 else vr(c,4)}")
                if tt == 1 and Hn: em(Hn.pop(0))
            if Wn: em(Wn.pop(0))
            elif j in ldsj: a.ds(f"ds_read_b128 {vr(WF+20*(k%5)+4*t,4)}, v{vLr} offset:{ldsj.index(j)*5120 + 1024*t}", ("r", j))
        if k == 10:
            flag_load(a, vFl, vFa, "fa")
            for e in range(3):
                a(f"v_lshrrev_b32 v2, 3, v1\nv_add_u32 v2, {8*e}, v2\nv_min_u32 v2, 19, v2\nv_lshlrev_b32 v2, 12, v2\nv_and_b32 v{EP+e}, 7, v1\nv_lshl_add_u32 v{EP+e}, v{EP+e}, 4, v2")
            a(f"v_bfe_u32 v2, v1, 2, 2\nv_lshlrev_b32 v2, 7, v2\nv_and_b32 v{EP+8}, 3, v1\nv_lshl_add_u32 v2, v{EP+8}, 3, v2\ns_lshl_b32 s10, s{sWave}, 5\nv_add_u32 v{EP+8}, s10, v2")
            for t in range(5):
                a(f"v_lshrrev_b32 v2, 4, v1\nv_add_u32 v2, {4*t}, v2\nv_mul_u32_u24 v{EP+9}, 205, v2\nv_lshrrev_b32 v{EP+9}, 10, v{EP+9}\nv_mul_u32_u24 v{EP+9}, {25600-2560}, v{EP+9}\nv_lshl_add_u32 v2, v2, 9, v{EP+9}\nv_add_u32 v{EP+3+t}, v2, v{EP+8}")
    ts(a)
    flag_check(a, vFl, vFa, "fa")
    ts(a)
    a(f"s_lshl_b32 s10, s12, 12\ns_lshl_b32 s11, s{sTb}, 7\ns_add_u32 s10, s10, s11\ns_add_u32 s10, s10, {A_OFF}\ns_mul_i32 s11, s{sWave}, 25600")
    for e in range(3):
        a(f"s_add_u32 m0, s11, {1024*e}\ns_nop 0\nbuffer_load_dwordx4 v{EP+e}, {sr(dWs,4)}, s10 offen {SC1} lds")
    a(f"s_lshl_b32 s10, s13, 6\ns_add_u32 s10, s10, {G_OFF}\nv_and_b32 v6, 15, v1\nv_lshlrev_b32 v7, 2, v6")
    a(f"buffer_load_dword v{EP+10}, v7, {sr(dWs,4)}, s10 offen {SC1}")
    a("s_barrier")
    a(f"s_mul_i32 s{sT}, s{sWave}, 5120\nv_add_u32 v4, s{sT}, v{vHl}\nv_add_u32 v5, {20480*3}, v4")
    lbl = [a.label("L_red") for _ in range(4)]
    lend = a.label("L_redend")
    for w in range(4):
        if w < 3: a(f"s_cmp_lg_u32 s{sWave}, {w}\ns_cbranch_scc1 {lbl[w+1]}")
        for tt in range(4):
            if tt == w: continue
            for t in range(5):
                a(f"ds_write_b128 v{4 if tt < 3 else 5}, {vr(ACC+4*(4*t+tt),4)} offset:{20480*tt + 1024*t if tt < 3 else 1024*t}")
        for t in range(5):
            for e in range(4): a(f"v_mov_b32 v{HF+4*t+e}, v{ACC+4*(4*t+w)+e}")
        a(f"s_waitcnt vmcnt(0) lgkmcnt(0)\ns_barrier")
        srcs = [x for x in range(4) if x != w]
        for si, sw in enumerate(srcs):
            for t in range(5): a(f"ds_read_b128 {vr(ACC+20*si+4*t,4)}, v{vLr} offset:{5120*sw + 1024*t}")
        if w < 3: a(f"s_branch {lend}\n{lbl[w+1]}:")
    a(f"{lend}:")
    AV = HF + 24
    a(f"s_lshl_b32 s10, s13, 4\nv_add_u32 v5, s10, v6\nv_mul_u32_u24 v5, 1280, v5\nv_lshrrev_b32 v2, 4, v1\nv_lshl_add_u32 v5, v2, 3, v5\ns_mul_i32 s{sT}, s{sDb}, 160")
    a(f"v_sub_f32 v{EP+11}, 1.0, v{EP+10}\nv_cvt_pk_bf16_f32 v{EP+11}, v{EP+11}, v{EP+11}\nv_lshlrev_b32 v{EP+11}, 16, v{EP+11}")
    a(f"s_waitcnt lgkmcnt(10)")
    for t in range(5): a(f"ds_read_b64_tr_b16 {vr(AV+2*t,2)}, v{EP+3+t}")
    for si in range(3):
        if si: a(f"s_waitcnt lgkmcnt({15 - 5*si})")
        for r in range(0, 20, 2): a(f"v_pk_add_f32 {vr(HF+r,2)}, {vr(HF+r,2)}, {vr(ACC+20*si+r,2)}")
    a("s_waitcnt lgkmcnt(0)")
    for t in range(5):
        x = EP + 12
        a(f"v_lshlrev_b32 v{x}, 16, v{AV+2*t}\nv_and_b32 v{x+1}, 0xffff0000, v{AV+2*t}\nv_lshlrev_b32 v{x+2}, 16, v{AV+2*t+1}\nv_and_b32 v{x+3}, 0xffff0000, v{AV+2*t+1}")
        for e in range(4): a(f"v_mul_f32 v{x+e}, v{EP+10}, v{x+e}")
        for e in range(4): a(f"v_fmac_f32 v{x+e}, v{EP+11}, v{HF+4*t+e}")
        a(f"v_cvt_pk_bf16_f32 v{AV+2*t}, v{x}, v{x+1}\nv_cvt_pk_bf16_f32 v{AV+2*t+1}, v{x+2}, v{x+3}")
        a(f"buffer_store_dwordx2 {vr(AV+2*t,2)}, v5, {sr(dOut,4)}, s{sT} offen offset:{32*t}")
    ts(a)
    if FINE:
        a("s_waitcnt vmcnt(0)")
        ts(a)

def wrap_prio(lines, lo):
    out = []; hi = False
    isvm = lambda x: x.strip().startswith(("buffer_", "global_"))
    for i, x in enumerate(lines):
        if isvm(x) and not hi:
            out.append("    s_setprio 3"); hi = True
        out.append(x)
        if hi and isvm(x):
            nxt = [y for y in lines[i+1:i+4]]
            if not any(isvm(y) for y in nxt) or any(y.endswith(":") or "branch" in y or "barrier" in y or "waitcnt" in y for y in nxt[:1]):
                out.append(f"    s_setprio {lo}"); hi = False
    return out
def header_comment():
    return open("cdna_kernels/" + NAME + ".s.ref").read().split("; Override launch")[0]

def build(fn):
    a = Asm()
    K = NAME + "_kernel"
    a(header_comment())
    a(f"; @launch grid=({GRID},1,1) block=(512,1,1) lds={LDS_BYTES}")
    a('.amdgcn_target "amdgcn-amd-amdhsa--gfx950"\n.text')
    a(kernel_header(K))
    if FINE: a("s_memrealtime s[96:97]")
    a("s_load_dwordx16 s[16:31], s[0:1], 0\ns_load_dwordx16 s[32:47], s[0:1], 64")
    a(f"s_cmp_ge_u32 s2, {GRID}\ns_cbranch_scc1 L_end")
    a("v_lshrrev_b32 v2, 6, v0\nv_and_b32 v1, 63, v0")
    a(f"v_readfirstlane_b32 s{sWave}, v2")
    if OPT["cpf"]:
        a(f"s_cmp_lt_u32 s2, 224\ns_cbranch_scc1 L_ncp\ns_getpc_b64 s[12:13]\nL_pc:")
        a(f"v_lshlrev_b32 v3, 6, v0\nv_min_u32 v3, L_code_end-L_pc-4, v3\nglobal_load_dword v24, v3, s[12:13]\nL_ncp:")
    a(f"s_lshr_b32 s{sHalf}, s{sWave}, 2\ns_and_b32 s{sWave}, s{sWave}, 3")
    a(f"s_lshr_b32 s10, s2, 3\ns_and_b32 s11, s10, 3\ns_lshr_b32 s10, s10, 2")
    a(f"s_and_b32 s{sRb}, s2, 3\ns_lshl_b32 s{sRb}, s{sRb}, 2\ns_add_u32 s{sRb}, s{sRb}, s11")
    a(f"s_bfe_u32 s{sCg}, s2, 0x10002\ns_mul_i32 s{sCg}, s{sCg}, 7\ns_add_u32 s{sCg}, s{sCg}, s10")
    gemm1_addr(a)
    if FINE:
        a(f"s_waitcnt lgkmcnt(0)\nv_mov_b32 v{vTS}, 0\nv_writelane_b32 v{vTS}, s96, 63")
        ts(a, 0)
    a(f"s_cmp_ge_u32 s2, {NS}\ns_waitcnt lgkmcnt(0)\ns_cbranch_scc1 L_nok")
    kgen_loads(a)
    a("L_nok:")
    srd(a, dWs, pWs, WS_SPAN)
    srd(a, dDbg, pDbg, 256)
    srd(a, dU, pU, 2048*1280)
    a(f"s_cmp_eq_u32 s{sHalf}, 0\ns_cbranch_scc1 L_gh\ns_cmp_ge_u32 s2, {NS}\ns_cbranch_scc1 L_load")
    if OPT["late"]: a("s_waitcnt vmcnt(0)")
    if OPT["l2t"]: l2touch(a)
    a(f"s_branch L_kg\nL_gh:\ns_cmp_ge_u32 s2, 224\ns_cbranch_scc1 L_p")
    gemm1_head(a)
    a(f"s_cmp_ge_u32 s2, {NS}\ns_cbranch_scc1 L_gb")
    q0 = list(a.vq)
    a("L_kg:")
    kgen(a, len(a.vq))
    a(f"s_cmp_lg_u32 s{sHalf}, 0\ns_cbranch_scc1 L_s")
    kgen_partial(a)
    xunit_store(a)
    ts(a, 22)
    a.vq = q0
    a("s_branch L_gc\nL_gb:\ns_waitcnt vmcnt(0)\nL_gc:")
    for x in BURST_REST[:OPT["b2"]]:
        a(x[0]); a.vm(*x[1])
    del BURST_REST[:OPT["b2"]]
    a(f"L_g1:\ns_setprio {OPT['pG1']}")
    fine_n[0] = 1
    gemm1_loop(a)
    ts(a)
    a("L_g2:")
    if OPT["x_nog2"]:
        a("s_waitcnt vmcnt(0)"); ts(a, 7)
    else: gemm2(a)
    ts_flush(a)
    a("L_end:\ns_endpgm")
    for x in SLOW: a(x)
    a("L_s:")
    fine_n[0] = 1
    ssm(a)
    ts_flush(a)
    a("s_endpgm")
    a("L_p:")
    ptouch(a)
    fine_n[0] = 1
    pgate(a)
    a("s_branch L_g2")
    a("L_load:")
    fine_n[0] = 1
    loader(a)
    a("L_ldx:")
    ts_flush(a)
    a("s_endpgm")
    a("L_code_end:")
    a('.section .rodata,"a"')
    a(kernel_desc(K, 256))
    errs = check_hazards(a.lines)
    for e in errs: print("HAZARD:", e)
    open(fn, "w").write(a.text())
    print(fn, len(a.lines), "lines;", len(errs), "hazards")

if __name__ == "__main__":
    FINE = "--fine" in sys.argv
    for x in sys.argv[2:]:
        if "=" in x:
            k, v = x.split("="); OPT[k] = int(v)
    build(sys.argv[1])
```

```python
import sys
from asmlib import *
NAME = "gated_mix__ssm_conv_s4__dense_activation_relu__prompt"

H_OFF = 0
UT_OFF = 8 << 20
A_OFF = 12 << 20
G_OFF = 15 << 20
FL_OFF = (15 << 20) + (1 << 19)
FH, FR, FP, FA, FG = FL_OFF, FL_OFF + 0x10000, FL_OFF + 0x20000, FL_OFF + 0x30000, FL_OFF + 0x40000
ST_OFF = 16 << 20
W2P_OFF = 20 << 20
WS_SPAN = 32 << 20
LDS_BYTES = 163840
SB = 106496
NS = 160
GRID = 256
pU, pAre, pAim, pBre, pBim, pCre, pCim, pLdt, pDsk, pBx, pW1, pW2, pGw, pOut, pDbg, pWs = range(16, 48, 2)
dU, dW1, dW2, dWs, dOut, dTmp, dDbg = 48, 52, 56, 60, 64, 68, 72
sWave, sHalf, sN = 3, 92, 98
SC1 = "sc1"
FINE = False
vTS = 11
fine_n = [0]
OPT_DBG = [0, 20, 21, 22, 1, 2, 4, 5, 6, 9, 11, 12, 15, 18]
OPT = dict(dbgwg=-1, scr=0, tlb=0, late=0, l2t=0, pbar=1, lsplit=384, g1rot=1, b2=8, rotb=0, x_s=0, x_l=0, x_nox=0, x_nog2=0, w_a=4, w_b=8, touch=0, cpf=1, slp=8, pL0=3, rot=1, alt=1, pG1=2, pS0=0, wrap=1, pS1=1, pG2=0,
           burst=8, afirst=1, s_pp=12, s_pc=15, s_pw=20, s_pn=9, l_w=0, l_a=4, g_fp=5, k_fr=0, k_ck=2, k_wr=7, wpf=1, frl=11, frc=14)

def ts(a, idx=None):
    if not FINE: return
    if idx is not None: fine_n[0] = idx
    a(f"s_memrealtime s[90:91]\ns_memtime s[88:89]\ns_waitcnt lgkmcnt(0)\nv_writelane_b32 v{vTS}, s90, {fine_n[0]}\nv_writelane_b32 v{vTS}, s88, {32+fine_n[0]}")
    a.lq.clear()
    fine_n[0] += 1
def ts_flush(a):
    if not FINE: return
    a(f"s_lshl_b32 s93, s{sHalf}, 8\ns_add_u32 s93, s93, s2\ns_lshl_b32 s93, s93, 2\ns_add_u32 s93, s93, s{sWave}\ns_lshl_b32 s93, s93, 8\ns_add_u32 s93, s93, {ST_OFF}\nv_lshlrev_b32 v2, 2, v1")
    a(f"buffer_store_dword v{vTS}, v2, {sr(dWs,4)}, s93 offen\ns_waitcnt vmcnt(0)")
    if OPT["dbgwg"] >= 0:
        l = a.label("L_dbg")
        a(f"s_cmp_lg_u32 s93, {ST_OFF + OPT['dbgwg']*4*256}\ns_cbranch_scc1 {l}")
        a(f"v_subrev_u32 v3, s96, v{vTS}\ns_nop 0")
        for n, idx in enumerate(OPT_DBG):
            a(f"v_readlane_b32 s10, v3, {idx}\ns_nop 3\nv_writelane_b32 v4, s10, {n}")
        a(f"v_lshlrev_b32 v2, 2, v1\ns_mov_b64 exec, 0x3fff\nbuffer_store_dword v4, v2, {sr(dDbg,4)}, 0 offen offset:8\ns_waitcnt vmcnt(0)\ns_mov_b64 exec, -1\n{l}:")

def nonce_load(a, v, vz, tag="nonce"):
    a.vm(f"buffer_load_dwordx2 {vr(v,2)}, v{vz}, {sr(dDbg,4)}, 0 offen {SC1}", tag)
def nonce_get(a, v, vz, tag="nonce", sCnt=87):
    l = a.label("L_nl"); d = a.label("L_nd")
    a.wait(vm=tag)
    a(f"s_mov_b32 s{sCnt}, 0\n{l}:\nv_readfirstlane_b32 s{sN}, v{v}\nv_readfirstlane_b32 s{sN+1}, v{v+1}\ns_add_u32 s{sCnt}, s{sCnt}, 1")
    a(f"s_min_u32 s86, s{sN}, s{sN+1}\ns_cmp_lg_u32 s86, 0\ns_cbranch_scc1 {d}\ns_cmp_ge_u32 s{sCnt}, 0x8000\ns_cbranch_scc1 {d}")
    a(f"s_sleep 4\nbuffer_load_dwordx2 {vr(v,2)}, v{vz}, {sr(dDbg,4)}, 0 offen {SC1}\ns_waitcnt vmcnt(0)\ns_branch {l}\n{d}:")
def flag_load(a, v, vaddr, tag):
    a.vm(f"buffer_load_dwordx2 {vr(v,2)}, v{vaddr}, {sr(dWs,4)}, 0 offen {SC1}", tag)
def flag_check(a, v, vaddr, tag, sCnt=87, pre=None):
    l = a.label("L_fl"); d = a.label("L_fd")
    a.wait(vm=tag)
    if pre:
        a(f"v_cmp_eq_u64 vcc, {sr(sN,2)}, {vr(v,2)}\ns_nop 0\ns_cmp_eq_u64 vcc, -1\ns_cbranch_scc1 {d}")
        q = list(a.vq); pre(); a.vq = q
    a(f"s_mov_b32 s{sCnt}, 0\n{l}:\nv_cmp_eq_u64 vcc, {sr(sN,2)}, {vr(v,2)}\ns_add_u32 s{sCnt}, s{sCnt}, 1\ns_cmp_eq_u64 vcc, -1\ns_cbranch_scc1 {d}")
    a(f"s_cmp_ge_u32 s{sCnt}, 0x8000\ns_cbranch_scc1 {d}\ns_sleep {OPT['slp']}")
    a(f"buffer_load_dwordx2 {vr(v,2)}, v{vaddr}, {sr(dWs,4)}, 0 offen {SC1}\ns_waitcnt vmcnt(0)\ns_branch {l}\n{d}:")
def set_flag(a, sOff, vz, vn, tag=None):
    a("s_mov_b64 exec, 1")
    a.vm(f"buffer_store_dwordx2 {vr(vn,2)}, v{vz}, {sr(dWs,4)}, s{sOff} offen {SC1}", tag)
    a("s_mov_b64 exec, -1")

vNo, vFl, vZ, vHl, vFa = 4, 6, 8, 9, 10
sTb, sDb, sK, sRb, sCg, sHf = 4, 5, 6, 7, 8, 9

def g_common(a):
    a(f"s_and_b32 s{sTb}, s2, 7\ns_lshl_b32 s{sTb}, s{sTb}, 2\ns_bfe_u32 s{sDb}, s2, 0x20003\ns_add_u32 s{sTb}, s{sTb}, s{sDb}\ns_lshr_b32 s{sDb}, s2, 5")
    a(f"s_mul_i32 s{sK}, s{sWave}, 14\ns_cmp_eq_u32 s{sWave}, 3\ns_cselect_b32 s{sK}, 41, s{sK}")
    a(f"v_mov_b32 v{vZ}, 0\nv_lshlrev_b32 v{vHl}, 4, v1")
    a(f"s_cmp_ge_u32 s{sWave}, 2\ns_cselect_b32 s10, 12, 13\nv_and_b32 v2, 31, v1\nv_min_u32 v2, s10, v2\nv_add_u32 v2, s{sK}, v2")
    a(f"s_mul_i32 s10, s{sDb}, 5\ns_lshr_b32 s10, s10, 2\nv_lshrrev_b32 v3, 5, v1\nv_add_u32 v3, s10, v3\nv_lshlrev_b32 v3, 12, v3\nv_lshl_add_u32 v{vFa}, v2, 6, v3\nv_add_u32 v{vFa}, {FR}, v{vFa}")

vX = [12, 13, 14, 15]; vW = [16, 17]; vRX = [18, 19, 20, 21]; vRW = [22, 23]
sX, sW, sMx, sMw, sT1 = 76, 77, 78, 79, 80
WB = 0; XB = 40960; NXS = 4; NWS = 5
FLG = 159744
BURST_REST = []; SLOW = []; PFW_LEFT = []
sFrOk = 14
vSy, vSa, vSv, vSf = 0, 152, 153, 2
WF = 156; HF = 92
sK0 = 101
def dmaX(c, e):
    pre = ""
    if e % 2 == 0: pre = f"s_add_u32 m0, s{sMx}, {(c%NXS)*16384}"
    if e == 0 and c > 0: pre += f"\ns_add_u32 s{sX}, s{sX}, 128\ns_cmp_eq_u32 s{sX}, 1280\ns_cselect_b32 s{sX}, 0, s{sX}"
    elif e % 2 == 0: pre += "\ns_nop 0"
    return [pre, (f"buffer_load_dwordx4 v{vX[e]}, {sr(dU,4)}, s{sX} offen offset:{1024*e} lds", ("x", c))]
def dmaW(i, e):
    pre = ""
    if e == 0:
        pre = f"s_add_u32 m0, s{sMw}, {(i%NWS)*8192}"
        pre += f"\ns_add_u32 s{sW}, s{sW}, {32*3456}\ns_cmp_eq_u32 s{sW}, {640*3456}\ns_cselect_b32 s{sW}, 0, s{sW}" if i > 0 else "\ns_nop 0"
    return [pre, (f"buffer_load_dwordx4 v{vW[e]}, {sr(dW1,4)}, s{sW} offen offset:{1024*e} lds", ("w", i))]
def gemm1_addr(a):
    sT = sT1; vH = 6
    if OPT["g1rot"]:
        a(f"s_lshl_b32 s{sK0}, s10, 1\ns_bfe_u32 s{sT}, s2, 0x10002\ns_add_u32 s{sK0}, s{sK0}, s{sT}\ns_cmp_ge_u32 s10, 5\ns_cselect_b32 s{sT}, 3, 0\ns_add_u32 s{sK0}, s{sK0}, s{sT}")
        a(f"s_mul_i32 s{sT}, s11, 5\ns_add_u32 s{sT}, s{sT}, 1\ns_lshr_b32 s{sT}, s{sT}, 1\ns_add_u32 s{sK0}, s{sK0}, s{sT}")
        for _ in range(2): a(f"s_cmp_ge_u32 s{sK0}, 10\ns_cselect_b32 s{sT}, 10, 0\ns_sub_u32 s{sK0}, s{sK0}, s{sT}")
    else: a(f"s_mov_b32 s{sK0}, 0")
    a(f"s_lshl_b32 s{sT}, s{sRb}, 7\ns_lshl_b32 s{sMx}, s{sWave}, 5\ns_add_u32 s{sT}, s{sT}, s{sMx}")
    a(f"v_lshrrev_b32 v2, 3, v1\nv_add_u32 v2, s{sT}, v2\nv_mul_u32_u24 v2, 1280, v2")
    a(f"v_lshrrev_b32 v3, 4, v1\nv_xor_b32 v{vH}, v3, v1\nv_and_b32 v{vH}, 7, v{vH}\nv_lshl_add_u32 v{vX[0]}, v{vH}, 4, v2")
    a(f"s_lshl_b32 s{sMx}, s{sWave}, 12\ns_add_u32 s{sMx}, s{sMx}, {XB}")
    a(f"v_xor_b32 v{vX[1]}, 64, v{vX[0]}\nv_add_u32 v{vX[1]}, {8*1280-1024}, v{vX[1]}\nv_add_u32 v{vX[2]}, {16*1280-2048}, v{vX[0]}\nv_add_u32 v{vX[3]}, {16*1280-2048}, v{vX[1]}")
    a(f"s_lshl_b32 s{sT}, s{sWave}, 3\nv_add_u32 v2, s{sT}, v3\nv_mul_u32_u24 v2, 3456, v2\ns_lshl_b32 s{sMw}, s{sCg}, 8\nv_add_u32 v2, s{sMw}, v2")
    a(f"v_lshlrev_b32 v{vW[0]}, 2, v3\nv_xor_b32 v{vW[0]}, v{vW[0]}, v1\nv_and_b32 v{vW[0]}, 15, v{vW[0]}\nv_lshl_add_u32 v{vW[0]}, v{vW[0]}, 4, v2")
    a(f"v_add_u32 v{vW[1]}, {4*3456-1024}, v{vW[0]}")
    a(f"s_lshl_b32 s{sMw}, s{sWave}, 11\ns_add_u32 s{sMw}, s{sMw}, {WB}")
def gemm1_head(a):
    a.reset_q()
    sT = sT1; vH = 6
    def em(L):
        a(L[0]); a.vm(*L[1])
    srd(a, dW1, pW1, 640*3456)
    a(f"s_lshl_b32 s{sX}, s{sK0}, 7\ns_mul_i32 s{sW}, s{sK0}, {64*3456}")
    def addr2():
        g_common(a)
        a(f"s_lshr_b32 s{sT}, s{sWave}, 1\ns_lshl_b32 s{sT}, s{sT}, 13\ns_add_u32 s{sT}, s{sT}, {XB}")
        a(f"v_and_b32 v2, 31, v1\nv_lshlrev_b32 v2, 7, v2\nv_add_u32 v2, s{sT}, v2")
        a(f"v_lshrrev_b32 v3, 5, v1\nv_bfe_u32 v{vH}, v1, 1, 3\nv_xor_b32 v3, v3, v{vH}\nv_lshl_add_u32 v{vRX[0]}, v3, 4, v2")
        for p in range(1, 4): a(f"v_xor_b32 v{vRX[p]}, {32*p}, v{vRX[0]}")
        a(f"v_bfe_u32 v{vH}, v1, 2, 2\nv_lshrrev_b32 v2, 5, v1\nv_lshlrev_b32 v2, 11, v2\nv_lshl_add_u32 v2, v{vH}, 8, v2")
        a(f"s_and_b32 s{sT}, s{sWave}, 1\ns_lshl_b32 s{sT}, s{sT}, 1\nv_xor_b32 v3, s{sT}, v{vH}\nv_lshl_add_u32 v2, v3, 6, v2")
        a(f"v_bfe_u32 v3, v1, 4, 1\nv_lshl_add_u32 v2, v3, 5, v2\nv_and_b32 v3, 3, v1\nv_lshl_add_u32 v2, v3, 3, v2")
        a(f"v_add_u32 v{vRW[0]}, {WB}, v2\nv_xor_b32 v{vRW[1]}, 64, v{vRW[0]}")
    if OPT["afirst"]: addr2()
    if OPT["late"]: a("s_waitcnt vmcnt(0)")
    rest = [dmaX(0, e) for e in range(4)] + [dmaW(0, 0), dmaW(0, 1), dmaW(1, 0), dmaW(1, 1)] + [dmaW(2, 0), dmaW(2, 1), dmaW(3, 0), dmaW(3, 1)] + [dmaX(1, e) for e in range(4)] + [dmaW(4, 0), dmaW(4, 1)] + [dmaX(2, e) for e in range(4)]
    for x in rest[:OPT["burst"]]: em(x)
    BURST_REST[:] = rest[OPT["burst"]:]
    if not OPT["afirst"]: addr2()
def gemm1_loop(a):
    sT = sT1; F = 24; ACC = 88
    def em(L):
        a(L[0]); a.vm(*L[1])
    def reads(i):
        O = []
        for p in range(2):
            b = F + 32*(i & 1) + 16*p; L = []
            for bf in range(2):
                for u in range(2):
                    L.append(f"ds_read_b64_tr_b16 {vr(b+4*bf+2*u,2)}, v{vRW[bf]} offset:{(i%NWS)*8192 + 4096*p + 1024*u}")
            for bt in range(2):
                L.append(f"ds_read_b128 {vr(b+8+4*bt,4)}, v{vRX[2*(i&1)+p]} offset:{((i>>1)%NXS)*16384 + 4096*bt}")
            O += [L[0], L[1], L[4], L[2], L[3], L[5]]
        return O
    def mfmas(i):
        L = []
        order = [(p, bf, bt) for p in range(2) for bf, bt in ((0,0),(1,0),(0,1),(1,1))]
        if i == 19: order = [(p, bf, bt) for bf, bt in ((0,0),(1,0),(0,1),(1,1)) for p in range(2)]
        for p, bf, bt in order:
            b = F + 32*(i & 1) + 16*p
            c = ACC + 16*(2*bf+bt)
            L.append(f"v_mfma_f32_32x32x16_bf16 {vr(c,16)}, {vr(b+4*bf,4)}, {vr(b+8+4*bt,4)}, {'0' if (i == 0 and p == 0) else vr(c,16)}")
        return L
    def stage_tag(i):
        tags = [("w", i), ("x", i >> 1)]
        idx = [max((k for k, t in enumerate(a.vq) if t == tg), default=-1) for tg in tags]
        return tags[0] if idx[0] >= idx[1] else tags[1]
    PFW = []; CARRY = []
    for i in range(21):
        a.wait(vm=stage_tag(i) if i < 20 else None, lg="all")
        a("s_barrier")
        if i in (0, 4, 10, 16): ts(a)
        D = []
        if i >= 1 and i + 4 < 20: D += [dmaW(i + 4, 0), dmaW(i + 4, 1)]
        c = (i >> 1) + 3
        if c < 10: D += [dmaX(c, 2*(i & 1)), dmaX(c, 2*(i & 1) + 1)]
        if BURST_REST or CARRY:
            D = CARRY + BURST_REST + D; del BURST_REST[:]
            CARRY = D[6:]; D = D[:6]
        dpos = (1, 3, 5, 6) if len(D) <= 4 else (0, 1, 3, 4, 5, 6)
        R = reads(i) if i < 20 else []
        M = mfmas(i - 1) if i > 0 else []
        if i == OPT["frc"] + 1 and OPT["wpf"]: PFW = g2_wprefetch()
        for k in range(8):
            if M: a(M[k])
            for _ in range(3):
                if R: a.ds(R.pop(0), ("f", i))
            if k in dpos and D: em(D.pop(0))
            elif k in (1, 3, 4, 5, 6) and PFW and not D:
                x = PFW.pop(0)
                if x[0]: a(x[0])
                a.vm(x[1], x[2])
            if k == 7 and i == 0: nonce_load(a, vNo, vZ)
            if k == 4 and i == OPT["g_fp"]:
                nonce_get(a, vNo, vZ)
                lf = a.label("L_nfp")
                a(f"s_cmp_ge_u32 s2, {NS}\ns_cbranch_scc1 {lf}")
                q = list(a.vq); set_flag(a, sFp, vZ, vNo); a.vq = q
                a(f"{lf}:")
            if k == 7 and i == OPT["frl"]: flag_load(a, vFl, vFa, "fr")
            if k == 4 and i == OPT["frc"]:
                a.wait(vm="fr")
                a(f"v_cmp_eq_u64 vcc, {sr(sN,2)}, {vr(vFl,2)}\ns_nop 0\ns_cmp_eq_u64 vcc, -1\ns_cselect_b32 s{sFrOk}, 1, 0")
            if k == 2 and i == OPT["frc"]: g2_setup(a)
        assert not R and not D
    PFW_LEFT[:] = PFW
    ts(a)
    a("s_setprio 3")
    vH = 12
    lskip = a.label("L_g1skip"); lgo = a.label("L_g1go")
    a(f"s_and_b32 s{sT}, s{sWave}, 1\ns_lshl_b32 s{sX}, s{sCg}, 1\ns_add_u32 s{sT}, s{sT}, s{sX}")
    a(f"s_lshr_b32 s{sX}, s{sWave}, 1\ns_lshl_b32 s{sW}, s{sRb}, 1\ns_add_u32 s{sX}, s{sX}, s{sW}")
    a(f"s_lshl_b32 s{sHf}, s{sX}, 5\ns_add_u32 s{sHf}, s{sHf}, s{sT}\ns_lshl_b32 s{sHf}, s{sHf}, 6\ns_add_u32 s{sHf}, s{sHf}, {FH}")
    a(f"s_cmp_lt_u32 s{sT}, 27\ns_cbranch_scc0 {lskip}")
    a(f"s_mul_i32 s{sX}, s{sX}, 27\ns_add_u32 s{sX}, s{sX}, s{sT}\ns_lshl_b32 s{sX}, s{sX}, 13\ns_add_u32 s{sW}, s{sX}, 4096")
    a(f"v_bfe_u32 v2, v1, 4, 1\nv_lshlrev_b32 v2, 10, v2\nv_lshrrev_b32 v3, 5, v1\nv_lshl_add_u32 v2, v3, 8, v2\nv_and_b32 v3, 15, v1\nv_lshl_add_u32 v{vH}, v3, 4, v2")
    n = 0
    for bf, bt in ((0,0),(1,0),(0,1),(1,1)):
        c = ACC + 16*(2*bf+bt)
        for half in range(2):
            d = F + 4*n; n += 1
            for e in range(4): a(f"v_cvt_pk_bf16_f32 v{d+e}, v{c+8*half+2*e}, v{c+8*half+2*e+1}")
            for e in range(4): a(f"v_pk_max_i16 v{d+e}, v{d+e}, 0")
            a.vm(f"buffer_store_dwordx4 {vr(d,4)}, v{vH}, {sr(dWs,4)}, s{sW if bf else sX} offen offset:{2048*bt + 512*half} {SC1}", "hst")
    a(f"{lskip}:")

def unit_split(a, sUn, sUk, sUc):
    a(f"s_mul_i32 s{sUk}, s{sUn}, 6554\ns_lshr_b32 s{sUk}, s{sUk}, 16\ns_mul_i32 s{sUc}, s{sUk}, 10\ns_sub_u32 s{sUc}, s{sUn}, s{sUc}")
def unit_dma(a, srd_, sUk, sUc, sL, loff, vOff, tag, sT=10, sT2=11):
    a(f"s_mul_i32 s{sT}, s{sUk}, {32*1280}\ns_lshl_b32 s{sT2}, s{sUc}, 7\ns_add_u32 s{sT}, s{sT}, s{sT2}")
    for e in range(4):
        a(f"s_add_u32 m0, s{sL}, {loff + 1024*e}")
        a(f"s_add_u32 s{sT2}, s{sT}, {8*1280*e}")
        a.vm(f"buffer_load_dwordx4 v{vOff}, {sr(srd_,4)}, s{sT2} offen lds", tag)
def unit_voff(a, v):
    a(f"v_lshrrev_b32 v{v}, 3, v1\nv_mul_u32_u24 v{v}, 1280, v{v}\nv_and_b32 v3, 7, v1\nv_lshl_add_u32 v{v}, v3, 4, v{v}")

def ptouch(a):
    a(f"v_mov_b32 v{vZ}, 0\ns_sub_u32 s79, s2, 224\ns_lshl_b32 s10, s79, 2\ns_add_u32 s10, s10, s{sWave}")
    a(f"s_cmp_lg_u32 s10, 0\ns_cbranch_scc1 L_nonn")
    a(f"s_memrealtime {sr(sN,2)}\ns_waitcnt lgkmcnt(0)\ns_or_b32 s12, s{sN}, 1\ns_or_b32 s13, s{sN+1}, 0x80000000\nv_mov_b32 v{vNo}, s12\nv_mov_b32 v{vNo+1}, s13")
    a(f"s_mov_b64 exec, 1\nbuffer_store_dwordx2 {vr(vNo,2)}, v{vZ}, {sr(dDbg,4)}, 0 offen {SC1}\ns_mov_b64 exec, -1")
    a("L_nonn:")
    if OPT["tlb"]:
        srd(a, dOut, pOut, 2048*1280)
        a(f"s_lshr_b32 s11, s79, 3\ns_lshl_b32 s11, s11, 2\ns_add_u32 s11, s11, s{sWave}\ns_lshl_b32 s11, s11, 21\nv_lshl_add_u32 v12, v1, 15, s11")
        a(f"buffer_load_dword v13, v12, {sr(dWs,4)}, 0 offen\nbuffer_load_dword v13, v12, {sr(dOut,4)}, 0 offen")
    if OPT["pbar"]: a("s_barrier")
    if OPT["touch"]:
        for rnd in range(2):
            a(f"s_add_u32 s11, s10, {27+128*rnd}\ns_min_u32 s11, s11, 269\ns_lshl_b32 s11, s11, 13\nv_lshl_add_u32 v12, v1, 7, s11\nglobal_load_dword v13, v12, {sr(pW1,2)}")
def loader(a):
    a.reset_q()
    if OPT["x_l"] == 2: return
    a(f"s_setprio {OPT['pL0']}")
    srd(a, dW2, pW2, 1728*1280)
    sUn, sL = 5, 12
    K = [6, 8]; C = [7, 9]
    a(f"s_sub_u32 s{sUn}, s2, {NS}\ns_lshl_b32 s{sUn}, s{sUn}, 2\ns_add_u32 s{sUn}, s{sUn}, s{sWave}\ns_lshl_b32 s{sL}, s{sWave}, 13\ns_add_u32 s{sL}, s{sL}, {SB}")
    unit_voff(a, 2)
    if OPT["lsplit"] == 256:
        a(f"s_cmp_ge_u32 s{sUn}, 284\ns_cbranch_scc1 L_ldx")
    unit_split(a, sUn, K[0], C[0])
    unit_dma(a, dW2, K[0], C[0], sL, 0, 2, "a")
    a(f"s_add_u32 s{sUn}, s{sUn}, 156\ns_cmp_lt_u32 s{sUn}, 384\ns_cselect_b32 s{sUn}, 600, s{sUn}")
    unit_split(a, sUn, K[1], C[1])
    a(f"s_cmp_ge_u32 s{sUn}, 540\ns_cbranch_scc1 L_ld1")
    unit_dma(a, dW2, K[1], C[1], sL, 4096, 2, "b")
    a("L_ld1:")
    a(f"v_mov_b32 v{vZ}, 0\nv_lshlrev_b32 v{vHl}, 4, v1")
    a(f"v_lshrrev_b32 v2, 5, v1\nv_lshlrev_b32 v2, 4, v2\nv_bfe_u32 v3, v1, 2, 3\nv_add_u32 v2, v2, v3")
    a(f"v_lshlrev_b32 v2, 7, v2\nv_and_b32 v3, 3, v1\nv_lshl_add_u32 v2, v3, 3, v2\nv_add_u32 v12, s{sL}, v2")
    a(f"s_cmp_ge_u32 s{sUn}, 540\ns_cselect_b32 s10, 0x7f000000, 0\nv_add_u32 v13, s10, v{vHl}\ns_cselect_b32 s{K[1]}, 63, s{K[1]}\ns_cselect_b32 s{C[1]}, 0, s{C[1]}")
    def bar(n=1):
        l = a.label("L_lb")
        a(f"s_cmp_ge_u32 s2, 224\ns_cbranch_scc1 {l}")
        for _ in range(n): a("s_barrier")
        a(f"{l}:")
    if OPT["x_l"] == 1:
        bar(21); return
    n0 = len(a.lines)
    if OPT["l_w"]: bar(OPT["l_w"])
    a("s_waitcnt vmcnt(0)")
    ts(a)
    for n in range(2):
        for t in range(4):
            for u in range(2): a.ds(f"ds_read_b64_tr_b16 {vr(16+16*n+4*t+2*u,2)}, v12 offset:{4096*n + 1024*u + 32*t}", ("rl", n))
    for n in range(2):
        for t in range(4):
            a(f"s_lshl_b32 s14, s{C[n]}, 2\ns_add_u32 s14, s14, {t}\ns_mul_i32 s15, s14, 205\ns_lshr_b32 s15, s15, 10\ns_mul_i32 s15, s15, {54*5-5}\ns_add_u32 s14, s14, s15\ns_mul_i32 s15, s{K[n]}, 5\ns_add_u32 s14, s14, s15\ns_lshl_b32 s14, s14, 10\ns_add_u32 s14, s14, {W2P_OFF}")
            a.wait(lg=("rl", n))
            a(f"buffer_store_dwordx4 {vr(16+16*n+4*t,4)}, v{13 if n else vHl}, {sr(dWs,4)}, s14 offen {SC1}")
    nonce_load(a, vNo, vZ)
    if OPT["pbar"]: a("s_cmp_lt_u32 s2, 224\ns_cbranch_scc1 L_ldp\ns_barrier\nL_ldp:")
    ts(a)
    bar(OPT["l_a"])
    a("s_waitcnt vmcnt(0)")
    nonce_get(a, vNo, vZ, tag="none")
    for n in range(2):
        if n: a(f"s_cmp_ge_u32 s{sUn}, 540\ns_cbranch_scc1 L_ld3")
        a(f"s_lshl_b32 s14, s{C[n]}, 6\ns_add_u32 s14, s14, s{K[n]}\ns_lshl_b32 s14, s14, 6\ns_add_u32 s14, s14, {FR}")
        set_flag(a, 14, vZ, vNo)
    a("L_ld3:")
    if OPT["wrap"]: a.lines[n0:] = wrap_prio(a.lines[n0:], 0)
    ts(a)
    bar(21 - OPT["l_w"] - OPT["l_a"])
def pgate(a):
    a.reset_q()
    sT, sM, sO, sP = 76, 77, 78, 79
    ts(a)
    g_common(a)
    srd(a, dTmp, pGw, 1280)
    vD = 14; vG = 26; vS = 30
    GW = 32; XF = 112; ACC = 224
    a(f"s_and_b32 s{sT}, s{sP}, 3\ns_lshl_b32 s{sT}, s{sT}, 3\ns_lshr_b32 s{sM}, s{sP}, 2\ns_add_u32 s{sT}, s{sT}, s{sM}")
    a(f"s_lshl_b32 s{sT}, s{sT}, 6\ns_lshl_b32 s{sM}, s{sWave}, 4\ns_add_u32 s{sT}, s{sT}, s{sM}\ns_mul_i32 s{sO}, s{sT}, 1280")
    for b in range(5):
        r0 = (64*b) // 80; lim = (r0 + 1) * 80 - 64*b
        a(f"v_cmp_le_u32 vcc, {lim}, v1\nv_mov_b32 v2, {r0}\nv_mov_b32 v3, {r0+1}\nv_cndmask_b32 v2, v2, v3, vcc" if lim < 64 else f"v_mov_b32 v2, {r0}")
        a(f"v_mul_u32_u24 v3, 80, v2\nv_sub_u32 v3, v1, v3\nv_add_u32 v3, {64*b}, v3")
        a(f"v_lshlrev_b32 v{vS}, 1, v2\nv_xor_b32 v3, v3, v{vS}\nv_mul_u32_u24 v2, 1280, v2\nv_lshl_add_u32 v{vD+b}, v3, 4, v2")
        a(f"v_xor_b32 v3, 8, v3\nv_lshl_add_u32 v{vD+5+b}, v3, 4, v2")
    a(f"s_mul_i32 s{sM}, s{sWave}, 20480")
    a(f"v_and_b32 v2, 15, v1\nv_mul_u32_u24 v{vS}, 1280, v2\nv_add_u32 v{vS}, s{sM}, v{vS}")
    a(f"v_and_b32 v2, 3, v1\nv_bfe_u32 v3, v1, 3, 1\nv_lshl_add_u32 v2, v3, 2, v2\nv_lshlrev_b32 v2, 1, v2\nv_lshrrev_b32 v3, 4, v1\nv_xor_b32 v2, v2, v3\nv_lshlrev_b32 v2, 4, v2")
    for m in range(4): a(f"v_xor_b32 v3, {64*m}, v2\nv_add_u32 v{vG+m}, v3, v{vS}")
    a("s_waitcnt vmcnt(0)")
    ts(a)
    for aa in range(4):
        for b in range(5):
            a(f"s_add_u32 m0, s{sM}, {(5*aa+b)*1024}\ns_nop 0")
            a.vm(f"buffer_load_dwordx4 v{vD+5*(aa>>1)+b}, {sr(dU,4)}, s{sO} offen lds", "x")
        if aa < 3: a(f"s_add_u32 s{sO}, s{sO}, 5120")
    a(f"v_lshrrev_b32 v2, 4, v1\nv_lshlrev_b32 v2, 4, v2")
    for s in range(20): a.vm(f"buffer_load_dwordx4 {vr(GW+4*s,4)}, v2, {sr(dTmp,4)}, 0 offen offset:{64*s}", "gw")
    nonce_load(a, vNo, vZ)
    a.wait(vm="x")
    ts(a)
    for s in range(20): a.ds(f"ds_read_b128 {vr(XF+4*s,4)}, v{vG+(s&3)} offset:{256*(s>>2)}", ("g", s))
    a.wait(vm="gw")
    for s in range(20):
        a.wait(lg=("g", s))
        a(f"v_mfma_f32_16x16x32_bf16 {vr(ACC,4)}, {vr(GW+4*s,4)}, {vr(XF+4*s,4)}, {'0' if s == 0 else vr(ACC,4)}")
    a("s_nop 7")
    a(f"v_cvt_pk_bf16_f32 v2, v{ACC}, v{ACC}\nv_lshlrev_b32 v2, 16, v2\nv_mul_f32 v2, 0xbfb8aa3b, v2\nv_exp_f32 v2, v2\ns_nop 0\nv_add_f32 v2, 1.0, v2\nv_rcp_f32 v2, v2\ns_nop 0")
    a(f"v_cvt_pk_bf16_f32 v2, v2, v2\nv_lshlrev_b32 v2, 16, v2")
    a(f"s_lshl_b32 s{sO}, s{sT}, 2\ns_add_u32 s{sHf}, s{sO}, {FG}\ns_add_u32 s{sO}, s{sO}, {G_OFF}\nv_lshlrev_b32 v3, 2, v1")
    flag_load(a, vFl, vFa, "fr")
    nonce_get(a, vNo, vZ)
    g2_setup(a)
    a(f"s_mov_b32 s{sFrOk}, 0\ns_waitcnt vmcnt(0)\ns_mov_b64 exec, 0xffff")
    a(f"buffer_store_dword v2, v3, {sr(dWs,4)}, s{sO} offen {SC1}")
    a("s_mov_b64 exec, -1")
    ts(a)

ROWB = 272; SCR = 32*ROWB
KS = 90112; U_A = 106496; KC_A = U_A + 2048; PB = KS + 4*SCR
XR = 220
sD, sDt, sDsk, sScr, sSh = 81, 82, 83, 84, 85
PR = 24; KA = 124
def kgen_loads(a):
    a(f"s_lshl_b32 s{sD}, s2, 2\ns_add_u32 s{sD}, s{sD}, s{sWave}\ns_lshl_b32 s10, s{sD}, 8\nv_lshl_add_u32 v2, v1, 2, s10")
    for k, p in enumerate((pAre, pAim, pBre, pBim, pCre, pCim)):
        a(f"global_load_dword v{PR+k}, v2, {sr(p,2)}")
    a(f"s_lshr_b32 s10, s{sD}, 1\ns_lshl_b32 s10, s10, 2")
    a(f"s_load_dword s{sDt}, {sr(pLdt,2)}, s10\ns_load_dword s{sDsk}, {sr(pDsk,2)}, s10")
def kgen(a, nyoung):
    vWr, vRdX, vRdY2, vDt, WA = 30, 31, 32, 33, 34
    Z = 44; ZC = 76; Z16 = 92; X = 94; O = 98; T = 114; FRG = 136; un = 200
    lq0 = a.lq; a.lq = []
    a(f"s_xor_b32 s10, s{sHalf}, 1\ns_lshl_b32 s10, s10, 2\ns_add_u32 s10, s10, s{sWave}\ns_mul_i32 s{sScr}, s10, {SCR}\ns_add_u32 s{sScr}, s{sScr}, {KS}\ns_lshl_b32 s{sSh}, s{sHalf}, 4")
    a(f"v_lshl_add_u32 v{vWr}, v1, 2, s{sScr}")
    for m in range(8): a(f"v_add_u32 v{WA+m}, {4*ROWB*m}, v{vWr}")
    a(f"v_and_b32 v2, 15, v1\nv_lshrrev_b32 v3, 4, v1\nv_lshl_add_u32 v3, v3, 4, s{sScr}")
    a(f"v_mul_u32_u24 v{vRdX}, {ROWB}, v2\nv_add_u32 v{vRdX}, v{vRdX}, v3")
    a(f"v_lshrrev_b32 v42, 2, v2\nv_and_b32 v43, 1, v2\nv_lshl_add_u32 v42, v42, 1, v43\nv_add_u32 v42, 16, v42\nv_and_b32 v43, 2, v2\nv_cmp_eq_u32 vcc, 0, v43\nv_mov_b32 v43, 24\ns_nop 0\nv_cndmask_b32 v42, v43, v42, vcc")
    a(f"v_mul_u32_u24 v{vRdY2}, {ROWB}, v42\nv_add_u32 v{vRdY2}, v{vRdY2}, v3")
    a("s_waitcnt lgkmcnt(0)")
    a(f"s_bitcmp1_b32 s{sD}, 0\ns_cselect_b32 s10, 0, 16\ns_lshl_b32 s{sDt}, s{sDt}, s10\ns_and_b32 s{sDt}, s{sDt}, 0xffff0000\ns_lshl_b32 s{sDsk}, s{sDsk}, s10\ns_lshr_b32 s{sDsk}, s{sDsk}, 16")
    a(f"v_mov_b32 v2, s{sDt}\nv_mul_f32 v3, 0x3fb8aa3b, v2\ns_mov_b32 s10, 0x3fb8aa3b\nv_fma_f32 v42, v2, s10, -v3\nv_fmac_f32 v42, 0x32a57060, v2")
    a(f"v_exp_f32 v3, v3\nv_mul_f32 v42, 0x3f317218, v42\nv_fma_f32 v3, v3, v42, v3\nv_cvt_pk_bf16_f32 v3, v3, v3\nv_lshlrev_b32 v{vDt}, 16, v3")
    if not OPT["late"]: a(f"s_cmp_eq_u32 s{sHalf}, 0\ns_cbranch_scc1 L_kw\ns_waitcnt vmcnt({min(2, OPT['l2t'])})\nL_kw:\ns_waitcnt vmcnt({nyoung})")
    ts(a, 20)
    def cmul(D, A_, B_):
        return [f"v_pk_mul_f32 {vr(D,2)}, {vr(A_,2)}, {vr(B_,2)} op_sel:[0,0] op_sel_hi:[1,0]",
                f"v_pk_fma_f32 {vr(D,2)}, {vr(A_,2)}, {vr(B_,2)}, {vr(D,2)} op_sel:[1,1,0] op_sel_hi:[0,1,1] neg_lo:[0,1,0]"]
    class Ch:
        def __init__(s_, ch): s_.ch = ch; s_.n = 0; s_.pend = None; s_.L = []
        def mul(s_, D, A_, B_): s_.L += cmul(D, A_, B_)
        def put(s_, row, S, const=None):
            o = O + 4*s_.ch + (s_.n % 4); s_.n += 1
            s_.L.append(f"v_cvt_pk_bf16_f32 v{o}, v{S}, v{S+1}" if const is None else f"v_mov_b32 v{o}, {const}")
            if s_.pend is not None and s_.pend[0] // 4 == row // 4:
                r0, o0 = s_.pend; s_.pend = None
                s_.L.append(("ds", f"ds_write2_b32 v{WA+row//4}, v{o0}, v{o} offset0:{(r0%4)*ROWB//4} offset1:{(row%4)*ROWB//4}"))
            else:
                s_.flush(); s_.pend = (row, o)
        def flush(s_):
            if s_.pend is not None:
                r0, o0 = s_.pend; s_.pend = None
                s_.L.append(("ds", f"ds_write_b32 v{vWr}, v{o0} offset:{r0*ROWB}"))
    def emit(seq):
        for x in seq:
            if isinstance(x, tuple): a.ds(x[1], "w")
            else: a(x)
    def interleave(*chains):
        out = []; n = max(len(c) for c in chains)
        for i in range(n):
            for c in chains:
                if i < len(c): out.append(c[i])
        return out
    for k in range(6): a(f"v_lshlrev_b32 v{un+k}, s{sSh}, v{PR+k}")
    for k in range(6): a(f"v_and_b32 v{un+k}, 0xffff0000, v{un+k}")
    ar_, ai_, br_, bi_, cr_, ci_ = range(un, un+6)
    a(f"v_mul_f32 v{ar_}, v{vDt}, v{ar_}\nv_mul_f32 v{ai_}, v{vDt}, v{ai_}\nv_mul_f32 v{br_}, v{vDt}, v{br_}\nv_mul_f32 v{bi_}, v{vDt}, v{bi_}")
    a(f"v_mul_f32 v{ar_}, 0x3fb8aa3b, v{ar_}\nv_mul_f32 v{ai_}, 0.15915494, v{ai_}")
    m = un + 6
    for k, lit in enumerate(("1.0", "0x41800000", "0x43800000")):
        a(f"v_mul_f32 v{m+k}, {lit}, v{ar_}\nv_mul_f32 v{m+3+k}, {lit}, v{ai_}")
    for k in range(3): a(f"v_fract_f32 v{m+3+k}, v{m+3+k}")
    for k in range(3): a(f"v_exp_f32 v{m+k}, v{m+k}")
    for k in range(3): a(f"v_cos_f32 v{m+6+k}, v{m+3+k}\nv_sin_f32 v{m+9+k}, v{m+3+k}")
    emit(cmul(X, cr_, br_))
    a(f"v_mul_f32 v{Z+2}, v{m}, v{m+6}\nv_mul_f32 v{Z+3}, v{m}, v{m+9}")
    a(f"v_mul_f32 v{Z16}, v{m+1}, v{m+7}\nv_mul_f32 v{Z16+1}, v{m+1}, -v{m+10}")
    a(f"v_mul_f32 v{ZC}, v{m+2}, v{m+8}\nv_mul_f32 v{ZC+1}, v{m+2}, v{m+11}")
    a(f"v_xor_b32 v{X+1}, 0x80000000, v{X+1}")
    cX, cZ, cC = Ch(0), Ch(1), Ch(2)
    cX.put(0, X)
    for i in range(1, 16):
        cX.mul(X + 2*(i & 1), X + 2*((i-1) & 1), Z16); cX.put(i, X + 2*(i & 1))
    cZ.put(16, 0, const="0x3f80"); cZ.put(17, Z+2)
    for f in range(2, 16):
        cZ.mul(Z + 2*f, Z + 2*(f//2), Z + 2*(f - f//2)); cZ.put(16 + f, Z + 2*f)
    for c in range(2, 9): cC.mul(ZC + 2*(c-1), ZC + 2*(c//2 - 1), ZC + 2*(c - c//2 - 1))
    emit(interleave(cX.L, cZ.L, cC.L))
    for s in range(4):
        a.ds(f"ds_read_b128 {vr(FRG+16*s,4)}, v{vRdX} offset:{64*s}", ("k", s))
        a.ds(f"ds_read_b128 {vr(FRG+16*s+4,4)}, v{vRdX} offset:{64*s+16*ROWB}", ("k", s))
    groups = [[(0, 1, 0), (1, 1, 2), (2, 1, 4), (3, 1, 6), (16, 4, 0), (17, 4, 8), (24, 8, 0)],
              [(4, 1, 8), (5, 1, 10), (6, 1, 12), (7, 1, 14), (18, 5, 0), (19, 5, 8)],
              [(8, 2, 0), (9, 2, 4), (10, 2, 8), (11, 2, 12), (20, 6, 0), (21, 6, 8)],
              [(12, 3, 0), (13, 3, 4), (14, 3, 8), (15, 3, 12), (22, 7, 0), (23, 7, 8)]]
    chains = []
    for k, g in enumerate(groups):
        c_ = Ch(k); d = T + 2*k
        for row, c, f in g:
            if f == 0: c_.put(row, ZC + 2*(c-1))
            else: c_.mul(d, ZC + 2*(c-1), Z + 2*f); c_.put(row, d)
        c_.flush(); chains.append(c_.L)
    emit(interleave(*chains))
    for s in range(4):
        a.ds(f"ds_read_b128 {vr(FRG+16*s+8,4)}, v{vRdX} offset:{64*s}", ("k2", s))
        a.ds(f"ds_read_b128 {vr(FRG+16*s+12,4)}, v{vRdY2} offset:{64*s}", ("k2", s))
    a.wait(lg=("k", 3))
    for s in range(4): a(f"v_mfma_f32_16x16x32_bf16 {vr(KA,4)}, {vr(FRG+16*s+4,4)}, {vr(FRG+16*s,4)}, {'0' if s == 0 else vr(KA,4)}")
    for s in range(4):
        a.wait(lg=("k2", s))
        for t in (1, 2): a(f"v_mfma_f32_16x16x32_bf16 {vr(KA+4*t,4)}, {vr(FRG+16*s+4+4*t,4)}, {vr(FRG+16*s,4)}, {'0' if s == 0 else vr(KA+4*t,4)}")
    ts(a, 21)
    a.lq = lq0
def kgen_partial(a):
    a(f"v_lshl_add_u32 v2, v1, 4, s{sScr}\ns_nop 6")
    for t in range(3): a.ds(f"ds_write_b128 v2, {vr(KA+4*t,4)} offset:{1024*t}", "w")

sUk, sUc, sFp = 12, 13, 100
def l2touch(a):
    first = 220 - 80*OPT["l2t"] if OPT["l2t"] < 3 else 22
    for rnd in range(OPT["l2t"]):
        a(f"s_lshr_b32 s8, s2, 3\ns_lshl_b32 s8, s8, 2\ns_add_u32 s8, s8, s{sWave}\ns_add_u32 s8, s8, {first+80*rnd}")
        if first + 80*rnd + 79 >= 220: a(f"s_cmp_ge_u32 s8, 220\ns_cbranch_scc1 L_l2e")
        a(f"s_mul_i32 s9, s8, 2979\ns_lshr_b32 s9, s9, 16\ns_mul_i32 s10, s9, 22\ns_sub_u32 s8, s8, s10")
        a(f"s_and_b32 s10, s2, 3\ns_lshl_b32 s10, s10, 3\ns_add_u32 s10, s10, s8\ns_mul_i32 s10, s10, {64*1280}\ns_lshl_b32 s11, s9, 7\ns_add_u32 s10, s10, s11")
        a(f"s_bfe_u32 s11, s2, 0x10002\ns_sub_u32 s14, 13, s11\ns_sub_u32 s15, s8, 8\ns_min_u32 s14, s14, s15\ns_lshl_b32 s14, s14, 7\ns_mul_i32 s11, s11, 1792\ns_add_u32 s11, s11, s14\ns_mul_i32 s14, s9, {64*3456}\ns_add_u32 s11, s11, s14")
        a(f"s_cmp_lt_u32 s8, 8\ns_cselect_b32 s10, s10, s11\ns_movk_i32 s11, 3456\ns_cselect_b32 s11, 1280, s11\ns_cselect_b64 s[14:15], {sr(pU,2)}, {sr(pW1,2)}")
        a(f"v_mul_u32_u24 v3, s11, v1\nv_add_u32 v3, s10, v3")
        a(f"global_load_dword v{250+rnd}, v3, s[14:15]")
    a("L_l2e:")
def xunit_store(a):
    RL = 24
    a(f"v_bfe_u32 v2, v1, 2, 2\nv_sub_u32 v3, 3, v2\nv_lshrrev_b32 v41, 4, v1\nv_lshl_add_u32 v3, v41, 3, v3")
    a(f"v_bfe_u32 v42, v3, 1, 3\nv_bfe_u32 v43, v1, 1, 1\nv_xor_b32 v42, v42, v43\nv_lshlrev_b32 v42, 4, v42\nv_lshl_add_u32 v42, v3, 7, v42\nv_and_b32 v43, 1, v1\nv_lshl_add_u32 v42, v43, 3, v42")
    for m in range(4): a(f"v_xor_b32 v{44+m}, {32*m}, v42\nv_add_u32 v{44+m}, s{sMx}, v{44+m}")
    a.wait(vm=("x", 0))
    for t in range(4):
        a.ds(f"ds_read_b64_tr_b16 {vr(RL+4*t,2)}, v{44+(t^1)} offset:512", ("rl", t))
        a.ds(f"ds_read_b64_tr_b16 {vr(RL+4*t+2,2)}, v{44+t}", ("rl", t))
    a(f"v_and_b32 v42, 3, v1\nv_xor_b32 v42, s{sWave}, v42\nv_lshlrev_b32 v42, 4, v42\nv_lshl_add_u32 v42, v41, 6, v42\nv_lshl_add_u32 v43, v2, 14, v42")
    a(f"s_lshl_b32 s{sUk}, s{sRb}, 2\ns_add_u32 s{sUk}, s{sUk}, s{sWave}\ns_lshl_b32 s10, s{sK0}, 18\ns_lshl_b32 s11, s{sUk}, 8\ns_add_u32 s10, s10, s11\ns_add_u32 s10, s10, {UT_OFF}")
    for t in range(4):
        a.wait(lg=("rl", t))
        a(f"buffer_store_dwordx4 {vr(RL+4*t,4)}, v43, {sr(dWs,4)}, s10 offen {SC1}")
        if t < 3: a(f"s_add_u32 s10, s10, 0x10000")
    a(f"s_lshl_b32 s{sFp}, s{sK0}, 6\ns_add_u32 s{sFp}, s{sFp}, s{sUk}\ns_lshl_b32 s{sFp}, s{sFp}, 6\ns_add_u32 s{sFp}, s{sFp}, {FP}")
def ssm(a):
    a.reset_q()
    sT, sP = 80, 5
    mOdd, m3, mN0 = 76, 78, 12
    cv = lambda d, x, y: a(f"v_cvt_pk_bf16_f32 v{d}, v{x}, v{y}")
    E = 24; Q = 48; RL = 88; PT = 136
    vA = 184; vB = 192; DK = 196
    a(f"s_setprio {OPT['pS0']}")
    a(f"s_mul_i32 s{sP}, s{sWave}, {SCR}\ns_add_u32 s{sP}, s{sP}, {PB}\ns_mul_i32 s{sT}, s{sWave}, 2816\ns_add_u32 s{sT}, s{sT}, {KC_A}")
    a(f"v_mov_b32 v{vZ}, 0\ns_lshl_b32 s10, s{sWave}, 2\ns_add_u32 s10, s10, {FLG+16}\nv_mov_b32 v12, s10\nds_write_b32 v12, v{vZ}")
    a(f"v_lshlrev_b32 v{vHl}, 4, v1\nv_lshl_add_u32 v14, v1, 4, s{sP}\ns_waitcnt lgkmcnt(0)\ns_barrier")
    n0 = len(a.lines)
    nb = [1]
    def B(n=1):
        for _ in range(n): a("s_barrier")
        nb[0] += n
    if OPT["x_s"] == 1:
        B(20); return
    if OPT["x_s"] == 2: return
    for t in range(3): a.ds(f"ds_read_b128 {vr(PT+4*t,4)}, v14 offset:{1024*t}", "pt")
    a(f"s_mov_b32 s{mOdd}, 0xaaaaaaaa\ns_mov_b32 s{mOdd+1}, 0xaaaaaaaa\ns_mov_b32 s{m3}, 0x88888888\ns_mov_b32 s{m3+1}, 0x88888888\ns_mov_b32 s{mN0}, 0xeeeeeeee\ns_mov_b32 s{mN0+1}, 0xeeeeeeee")
    a(f"v_and_b32 v2, 15, v1\nv_lshrrev_b32 v3, 4, v1")
    a(f"v_lshlrev_b32 v15, 6, v2\nv_lshl_add_u32 v15, v3, 4, v15\nv_add_u32 v15, s{sT}, v15")
    B()
    nonce_load(a, vNo, vZ)
    a(f"v_lshlrev_b32 v16, 5, v2\nv_lshl_add_u32 v16, v3, 4, v16\nv_lshlrev_b32 v17, 4, v2\nv_lshl_add_u32 v17, v3, 8, v17\nv_cmp_gt_u32 vcc, 32, v1\ns_nop 1\nv_cndmask_b32 v16, v17, v16, vcc\nv_add_u32 v16, s{sT}, v16")
    a(f"v_lshlrev_b32 v17, 3, v2\nv_lshl_add_u32 v17, v3, 7, v17\nv_add_u32 v17, s{sT}, v17")
    a(f"v_lshl_add_u32 v18, v1, 2, s{sT}")
    B()
    a.wait(lg="pt")
    for r in range(11): a(f"v_add_f32 v{KA+r}, v{KA+r}, v{PT+r}")
    a.ds(f"ds_write_b128 v15, {vr(KA,4)}", "w")
    a.ds(f"ds_write_b128 v16, {vr(KA+4,4)} offset:1024", "w")
    a.ds(f"ds_write_b64 v17, {vr(KA+8,2)} offset:2048", "w")
    a.ds(f"ds_write_b32 v18, v{KA+10} offset:2560", "w")
    B()
    a(f"v_lshl_add_u32 v19, v1, 4, s{sT}\nv_lshl_add_u32 v20, v1, 3, s{sT}")
    a(f"v_lshrrev_b32 v21, 1, v1\nv_lshl_add_u32 v21, v21, 2, s{sT}\nv_add_u32 v21, 2048, v21\nv_add_u32 v22, 1536, v18\nv_mov_b32 v23, s{sT}")
    a.ds(f"ds_read_b128 {vr(E,4)}, v19", "e"); a.ds(f"ds_read_b32 v{E+4}, v19 offset:16", "e"); a.ds(f"ds_read_b32 v{E+5}, v23", "e")
    a.ds(f"ds_read_b64 {vr(E+6,2)}, v20 offset:1024", "e"); a.ds(f"ds_read_b32 v{E+8}, v20 offset:1032", "e")
    B()
    for w in (2, 3): a.ds(f"ds_read2_b32 {vr(E+10+2*(w-2),2)}, v22 offset0:{64*(w-2)} offset1:{64*(w-2)+1}", "e2")
    for w in range(4, 8): a.ds(f"ds_read2_b32 {vr(E+14+2*(w-4),2)}, v21 offset0:{32*(w-4)} offset1:{32*(w-4)+1}", "e2")
    B()
    nonce_get(a, vNo, vZ)
    a(f"v_and_b32 v2, 15, v1\nv_lshrrev_b32 v3, 4, v1\nv_lshlrev_b32 v21, 3, v3\nv_sub_u32 v21, v2, v21")
    a(f"v_lshl_add_u32 v22, v21, 2, s{sP}")
    for aa in range(8): a(f"v_add_u32 v{vA+aa}, {4*(25 + 256*aa)}, v22")
    a(f"v_lshl_add_u32 v22, v2, 1, v3")
    for m in range(4):
        if m % 2 == 0: B()
        a(f"v_add_u32 v23, {14 - 4*m}, v22\nv_lshrrev_b32 v20, 2, v23\nv_xor_b32 v20, s{sWave}, v20\nv_and_b32 v20, 3, v20\nv_lshlrev_b32 v20, 4, v20\nv_lshl_add_u32 v20, v23, 6, v20\nv_add_u32 v{vB+m}, {U_A}, v20")
    B()
    a(f"v_sub_u32 v21, -9, v21\nv_and_b32 v22, 1, v21\nv_lshlrev_b32 v22, 4, v22\nv_mov_b32 v23, s{sDsk}\nv_lshlrev_b32 v22, v22, v23\nv_ashrrev_i32 v21, 1, v21")
    for p in range(4): a(f"v_cmp_eq_u32 vcc, {p}, v21\ns_nop 1\nv_cndmask_b32 v{DK+p}, 0, v22, vcc")
    B()
    a(f"s_lshr_b32 s9, s2, 4\ns_lshl_b32 s9, s9, 2\ns_add_u32 s9, s9, s{sWave}\ns_lshl_b32 s9, s9, 10\ns_add_u32 s9, s9, {FP}\nv_and_b32 v2, 15, v1\nv_lshl_add_u32 v{vFa}, v2, 6, s9")
    a(f"s_lshl_b32 s9, s2, 2\ns_add_u32 s9, s9, s{sWave}\ns_lshl_b32 s9, s9, 12\ns_add_u32 s9, s9, {UT_OFF}\ns_lshl_b32 s10, s{sWave}, 12\ns_add_u32 m0, s10, {U_A + 2048}\nv_mov_b32 v13, {FLG}")
    a.wait(lg="e2")
    for e in range(4): cv(Q+e, E+e, E+e+1)
    cv(Q+4, E+6, E+6); cv(Q+5, E+6, E+7); cv(Q+6, E+7, E+8); cv(Q+7, E+8, E+8)
    a(f"v_mov_b32 v{Q+32}, 0\nv_mov_b32 v{Q+33}, 0\nv_mov_b32 v{Q+34}, 0\nv_cvt_pk_bf16_f32 v{Q+35}, 0, v{E+5}\nv_cndmask_b32 v{Q+35}, 0, v{Q+35}, {sr(m3,2)}")
    for w in range(2, 8):
        if w % 2 == 0: B()
        if nb[0] - 1 == OPT["s_pp"] and w % 2 == 0: flag_load(a, vFl, vFa, "fp")
        q = Q+4*w
        if w < 4:
            al = E+10+2*(w-2); be = al+1
            a(f"v_cndmask_b32 v2, v{al}, v{be}, {sr(mOdd,2)}")
            cv(q, al, al); cv(q+3, be, be); cv(q+1, al, 2); cv(q+2, 2, be)
        else:
            al = E+14+2*(w-4); be = al+1
            a(f"v_cndmask_b32 v2, v{al}, v{be}, {sr(m3,2)}\nv_cndmask_b32 v3, v{al}, v{be}, {sr(mOdd,2)}\nv_cndmask_b32 v15, v{al}, v{be}, {sr(mN0,2)}")
            cv(q, 2, 3); cv(q+1, 3, 3); cv(q+2, 3, 3); cv(q+3, 3, 15)
    if OPT["s_pp"] > 12:
        B(OPT["s_pp"] - 12); flag_load(a, vFl, vFa, "fp")
    B(OPT["s_pc"] + 1 - nb[0])
    def udma():
        for e in range(4): a(f"buffer_load_dwordx4 v{vHl}, {sr(dWs,4)}, s9 offen offset:{1024*e} {SC1} lds")
    a.wait(vm="fp")
    a(f"v_cmp_eq_u64 vcc, {sr(sN,2)}, {vr(vFl,2)}\ns_mov_b32 s15, 1\ns_cmp_eq_u64 vcc, -1\ns_cbranch_scc0 L_late\ns_mov_b32 s15, 0")
    udma()
    a("L_late:")
    B(OPT["s_pw"] + 1 - nb[0])
    W = [f"ds_write_b128 v14, {vr(Q+4*w,4)} offset:{64+1024*w}" for w in range(8)]
    W.append(f"s_mov_b64 exec, 0xf\nds_write_b128 v14, {vr(Q+32,4)}\ns_mov_b64 exec, -1\ns_lshl_b32 s10, s{sWave}, 9\ns_add_u32 s10, s10, {U_A}\nv_lshl_add_u32 v2, v1, 3, s10\nds_write_b64 v2, {vr(Q+32,2)}")
    while W:
        for _ in range(OPT["s_pn"]):
            if W: a(W.pop(0))
        if nb[0] < 21: B()
    B(21 - nb[0])
    if OPT["wrap"]: a.lines[n0:] = wrap_prio(a.lines[n0:], OPT["pS0"])
    a(f"s_setprio {OPT['pS1']}\ns_cmp_eq_u32 s15, 0\ns_cbranch_scc1 L_uok")
    flag_check(a, vFl, vFa, "none")
    udma()
    a("L_uok:")
    ts(a)
    a(f"v_mov_b32 v2, 1\ns_waitcnt vmcnt(0)\nds_write_b32 v12, v2")
    a(f"L_su:\nds_read_b128 v[16:19], v13 offset:16\ns_waitcnt lgkmcnt(0)\nv_min3_u32 v2, v16, v17, v18\nv_min_u32 v2, v2, v19\nv_cmp_ne_u32 vcc, 0, v2\ns_cbranch_vccz L_su")
    a.reset_q()
    ts(a)
    AC = 24; FB = 56
    def rdA(rho, aa):
        d = FB + 64*(rho & 1) + 4*aa
        return [(f"ds_read2_b32 {vr(d,2)}, v{vA+aa} offset0:{32*rho} offset1:{32*rho+2}", ("c", rho, aa)),
                (f"ds_read2_b32 {vr(d+2,2)}, v{vA+aa} offset0:{32*rho+4} offset1:{32*rho+6}", ("c", rho, aa))]
    def rdB(rho, b):
        d = FB + 64*(rho & 1) + 32 + 4*b
        return [(f"ds_read_b128 {vr(d,4)}, v{vB+(rho&3)} offset:{2048*b + (1024 if rho < 4 else 0)}", ("c", rho, b))]
    def rds(rho):
        L = []
        for k in range(8): L += rdA(rho, k) + rdB(rho, k)
        return L
    for x in rds(0): a.ds(*x)
    first = [True]*8
    for rho in range(8):
        nxt = rds(rho + 1) if rho < 7 else []
        base = FB + 64*(rho & 1)
        ms = []
        for k in range(8):
            grp = [(aa, b) for aa in range(k+1) for b in range(k+1) if max(aa, b) == k and aa + b < 8]
            if rho == 0: grp.append((-1, k))
            ms.append(grp)
        cnt = 0
        for k in range(8):
            a.wait(lg=("c", rho, k))
            for aa, b in ms[k]:
                Tt = b if aa < 0 else aa + b
                A_ = vr(DK, 4) if aa < 0 else vr(base + 4*aa, 4)
                a(f"v_mfma_f32_16x16x32_bf16 {vr(AC+4*Tt,4)}, {A_}, {vr(base+32+4*b,4)}, {'0' if first[Tt] else vr(AC+4*Tt,4)}")
                first[Tt] = False
                cnt += 1
                if cnt > 4 and nxt and rho > 0 or (rho == 0 and k >= 3 and nxt): a.ds(*nxt.pop(0))
        for x in nxt: a.ds(*x)
    ts(a)
    a("s_setprio 3")
    a(f"v_and_b32 v2, 15, v1\nv_lshlrev_b32 v2, 5, v2\nv_bfe_u32 v3, v1, 4, 1\nv_lshl_add_u32 v2, v3, 9, v2\nv_lshrrev_b32 v3, 5, v1\nv_lshl_add_u32 v2, v3, 4, v2")
    a(f"s_lshl_b32 s9, s{sD}, 12\ns_add_u32 s9, s9, {A_OFF}\ns_lshl_b32 s10, s{sD}, 6\ns_add_u32 s10, s10, {FA}")
    for Tp in range(4):
        d = FB + 4*Tp; c = AC + 8*Tp
        cv(d, c, c+1); cv(d+1, c+2, c+3); cv(d+2, c+4, c+5); cv(d+3, c+6, c+7)
    for Tp in range(4):
        d = FB + 4*Tp
        if Tp == 3: a("s_nop 0")
        a(f"v_permlane16_swap_b32 v{d}, v{d+2}\nv_permlane16_swap_b32 v{d+1}, v{d+3}")
        a(f"buffer_store_dwordx4 {vr(d,4)}, v2, {sr(dWs,4)}, s9 offen offset:{1024*Tp} {SC1}")
    ts(a)
    a("s_waitcnt vmcnt(0)")
    set_flag(a, 10, vZ, vNo)
    ts(a)

sWb, sHb, sO, sM2, sT2, sQ, sRot, sCnt, sO2 = 81, 82, 83, 84, 85, 15, 94, 95, 76
def g2_setup(a):
    a(f"s_mul_i32 s{sWb}, s{sDb}, 54\ns_add_u32 s{sWb}, s{sWb}, s{sK}\ns_mul_i32 s{sWb}, s{sWb}, 5120\ns_add_u32 s{sWb}, s{sWb}, {W2P_OFF}")
    a(f"s_mul_i32 s{sM2}, s{sWave}, 20480\ns_cmp_ge_u32 s{sWave}, 2\ns_cselect_b32 s{sCnt}, 13, 14")
    a(f"s_mul_i32 s{sRot}, s{sDb}, 13\ns_lshr_b32 s{sRot}, s{sRot}, 3" if OPT["rot"] else f"s_mov_b32 s{sRot}, 0")
    if OPT["rotb"]: a(f"s_and_b32 s{sT2}, s{sTb}, 3\ns_mul_i32 s{sT2}, s{sT2}, {OPT['rotb']}\ns_add_u32 s{sRot}, s{sRot}, s{sT2}\ns_cmp_ge_u32 s{sRot}, s{sCnt}\ns_cselect_b32 s{sT2}, s{sCnt}, 0\ns_sub_u32 s{sRot}, s{sRot}, s{sT2}")
def koff(j, stride, base, dst):
    return (f"s_add_u32 s{sT2}, s{sRot}, {j}\ns_cmp_ge_u32 s{sT2}, s{sCnt}\ns_cselect_b32 s{sQ}, s{sCnt}, 0\ns_sub_u32 s{sT2}, s{sT2}, s{sQ}\n"
            f"s_mul_i32 s{sT2}, s{sT2}, {stride}\ns_add_u32 s{dst}, s{sT2}, s{base}")
def wreg(j):
    L = []
    for t in range(5):
        pre = koff(j, 5120, sWb, sO) if t == 0 else (f"s_add_u32 s{sO}, s{sO}, 4096" if t == 4 else None)
        L.append((pre, f"buffer_load_dwordx4 {vr(WF+20*(j%5)+4*t,4)}, v{vHl}, {sr(dWs,4)}, s{sO} offen offset:{1024*(t%4)} {SC1}", ("w2", j)))
    return L
def g2_wprefetch():
    L = []
    for j in range(5): L += wreg(j)
    return L
def gemm2(a):
    srd(a, dOut, pOut, 2048*1280)
    sM, sT = sM2, sT2
    ACC = 12
    vH13, vLr = 0, 3
    NK = 14
    def em(x):
        if x[0]: a(x[0])
        a.vm(x[1], x[2])
    full = g2_wprefetch()
    ndone = len(full) - len(PFW_LEFT) if OPT["wpf"] else 0
    lok = a.label("L_frok")
    a(f"s_cmp_eq_u32 s{sFrOk}, 1\ns_cbranch_scc1 {lok}")
    q = list(a.vq)
    a("s_waitcnt vmcnt(0)"); set_flag(a, sHf, vZ, vNo)
    flag_check(a, vFl, vFa, "none")
    a(f"s_setprio {OPT['pG2']}")
    for x in full[:ndone]: em(x)
    a.vq = q
    a(f"{lok}:\ns_setprio {OPT['pG2']}")
    ts(a, 8)
    ldsj = [6, 8, 10, 12] if OPT["alt"] else [10, 11, 12, 13]
    def wlds(j):
        L = []; sl = ldsj.index(j) * 5120
        for t in range(5):
            pre = None
            if t == 0: pre = f"s_add_u32 m0, s{sM}, {sl}\n" + koff(j, 5120, sWb, sO)
            if t == 4: pre = f"s_add_u32 m0, s{sM}, {sl+4096}\ns_add_u32 s{sO}, s{sO}, 4096"
            L.append((pre, f"buffer_load_dwordx4 v{vHl}, {sr(dWs,4)}, s{sO} offen offset:{1024*(t%4)} {SC1} lds", ("wl", j)))
        return L
    PF = full[ndone:]
    for j in ldsj: PF += wlds(j)
    for x in PF[:OPT["w_a"]]: em(x)
    a(f"s_add_u32 s10, s{sCnt}, s{sK}\ns_sub_u32 s10, s10, 1\ns_lshr_b32 s10, s10, 1\ns_lshr_b32 s11, s{sK}, 1\nv_add_u32 v2, s11, v1\nv_min_u32 v2, s10, v2")
    a(f"s_lshl_b32 s10, s{sTb}, 11\ns_add_u32 s10, s10, {FH}\nv_lshl_add_u32 v{vFa}, v2, 6, s10")
    a(f"s_mul_i32 s{sHb}, s{sTb}, 54\ns_add_u32 s{sHb}, s{sHb}, s{sK}\ns_lshl_b32 s{sHb}, s{sHb}, 12")
    a(f"s_cmp_ge_u32 s{sWave}, 2\ns_cselect_b32 s10, 0x7f000000, 0\nv_add_u32 v{vH13}, s10, v{vHl}\nv_add_u32 v{vLr}, s{sM}, v{vHl}")
    a("s_setprio 3")
    a.wait(vm="hst")
    set_flag(a, sHf, vZ, vNo, "hf")
    a(f"s_setprio {OPT['pG2']}")
    ts(a)
    for x in PF[OPT["w_a"]:OPT["w_a"]+OPT["w_b"]]: em(x)
    flag_load(a, vFl, vFa, "fh")
    for x in PF[OPT["w_a"]+OPT["w_b"]:]: em(x)
    a.wait(vm="fh")
    ts(a)
    flag_check(a, vFl, vFa, "fh")
    ts(a)
    def hld(j):
        return [(koff(j, 4096, sHb, sO2) if tt == 0 else None,
                 f"buffer_load_dwordx4 {vr(HF+16*(j%4)+4*tt,4)}, v{vH13 if j == 13 else vHl}, {sr(dWs,4)}, s{sO2} offen offset:{1024*tt} {SC1}", ("h", j)) for tt in range(4)]
    for j in range(4):
        for x in hld(j): em(x)
    a(f"s_mul_i32 s12, s{sDb}, 80\ns_mul_i32 s10, s{sWave}, 20\ns_add_u32 s12, s12, s10\ns_lshl_b32 s10, s12, 6\ns_add_u32 s10, s10, {FA}\nv_lshl_add_u32 v{vFa}, v1, 6, s10")
    a(f"s_lshl_b32 s13, s{sTb}, 2\ns_add_u32 s13, s13, s{sWave}\ns_lshl_b32 s10, s13, 6\ns_add_u32 s10, s10, {FG}")
    a(f"v_cmp_gt_u32 vcc, 20, v1\nv_mov_b32 v2, s10\ns_nop 0\nv_cndmask_b32 v{vFa}, v2, v{vFa}, vcc")
    EP = WF + 80
    for k in range(NK):
        tags = [("h", k), ("w2", k)]
        idx = [max((i for i, t in enumerate(a.vq) if t == tg), default=-1) for tg in tags]
        a.wait(vm=tags[0] if idx[0] >= idx[1] else tags[1], lg=("r", k))
        if k in (0, 5, 10): ts(a)
        Hn = hld(k + 3) if (k >= 1 and k + 3 < NK) else []
        j = k + 5
        Wn = wreg(j) if (j < NK and j not in ldsj) else []
        if j in ldsj: a.wait(vm=("wl", j))
        for t in range(5):
            for tt in range(4):
                c = ACC + 4*(4*t + tt)
                a(f"v_mfma_f32_16x16x32_bf16 {vr(c,4)}, {vr(WF+20*(k%5)+4*t,4)}, {vr(HF+16*(k%4)+4*tt,4)}, {'0' if k == 0 else vr(c,4)}")
                if tt == 1 and Hn: em(Hn.pop(0))
            if Wn: em(Wn.pop(0))
            elif j in ldsj: a.ds(f"ds_read_b128 {vr(WF+20*(k%5)+4*t,4)}, v{vLr} offset:{ldsj.index(j)*5120 + 1024*t}", ("r", j))
        if k == 10:
            flag_load(a, vFl, vFa, "fa")
            for e in range(3):
                a(f"v_lshrrev_b32 v2, 3, v1\nv_add_u32 v2, {8*e}, v2\nv_min_u32 v2, 19, v2\nv_lshlrev_b32 v2, 12, v2\nv_and_b32 v{EP+e}, 7, v1\nv_lshl_add_u32 v{EP+e}, v{EP+e}, 4, v2")
            a(f"v_bfe_u32 v2, v1, 2, 2\nv_lshlrev_b32 v2, 7, v2\nv_and_b32 v{EP+8}, 3, v1\nv_lshl_add_u32 v2, v{EP+8}, 3, v2\ns_lshl_b32 s10, s{sWave}, 5\nv_add_u32 v{EP+8}, s10, v2")
            for t in range(5):
                a(f"v_lshrrev_b32 v2, 4, v1\nv_add_u32 v2, {4*t}, v2\nv_mul_u32_u24 v{EP+9}, 205, v2\nv_lshrrev_b32 v{EP+9}, 10, v{EP+9}\nv_mul_u32_u24 v{EP+9}, {25600-2560}, v{EP+9}\nv_lshl_add_u32 v2, v2, 9, v{EP+9}\nv_add_u32 v{EP+3+t}, v2, v{EP+8}")
    ts(a)
    flag_check(a, vFl, vFa, "fa")
    ts(a)
    a(f"s_lshl_b32 s10, s12, 12\ns_lshl_b32 s11, s{sTb}, 7\ns_add_u32 s10, s10, s11\ns_add_u32 s10, s10, {A_OFF}\ns_mul_i32 s11, s{sWave}, 25600")
    for e in range(3):
        a(f"s_add_u32 m0, s11, {1024*e}\ns_nop 0\nbuffer_load_dwordx4 v{EP+e}, {sr(dWs,4)}, s10 offen {SC1} lds")
    a(f"s_lshl_b32 s10, s13, 6\ns_add_u32 s10, s10, {G_OFF}\nv_and_b32 v6, 15, v1\nv_lshlrev_b32 v7, 2, v6")
    a(f"buffer_load_dword v{EP+10}, v7, {sr(dWs,4)}, s10 offen {SC1}")
    a("s_barrier")
    a(f"s_mul_i32 s{sT}, s{sWave}, 5120\nv_add_u32 v4, s{sT}, v{vHl}\nv_add_u32 v5, {20480*3}, v4")
    lbl = [a.label("L_red") for _ in range(4)]
    lend = a.label("L_redend")
    for w in range(4):
        if w < 3: a(f"s_cmp_lg_u32 s{sWave}, {w}\ns_cbranch_scc1 {lbl[w+1]}")
        for tt in range(4):
            if tt == w: continue
            for t in range(5):
                a(f"ds_write_b128 v{4 if tt < 3 else 5}, {vr(ACC+4*(4*t+tt),4)} offset:{20480*tt + 1024*t if tt < 3 else 1024*t}")
        for t in range(5):
            for e in range(4): a(f"v_mov_b32 v{HF+4*t+e}, v{ACC+4*(4*t+w)+e}")
        a(f"s_waitcnt vmcnt(0) lgkmcnt(0)\ns_barrier")
        srcs = [x for x in range(4) if x != w]
        for si, sw in enumerate(srcs):
            for t in range(5): a(f"ds_read_b128 {vr(ACC+20*si+4*t,4)}, v{vLr} offset:{5120*sw + 1024*t}")
        if w < 3: a(f"s_branch {lend}\n{lbl[w+1]}:")
    a(f"{lend}:")
    AV = HF + 24
    a(f"s_lshl_b32 s10, s13, 4\nv_add_u32 v5, s10, v6\nv_mul_u32_u24 v5, 1280, v5\nv_lshrrev_b32 v2, 4, v1\nv_lshl_add_u32 v5, v2, 3, v5\ns_mul_i32 s{sT}, s{sDb}, 160")
    a(f"v_sub_f32 v{EP+11}, 1.0, v{EP+10}\nv_cvt_pk_bf16_f32 v{EP+11}, v{EP+11}, v{EP+11}\nv_lshlrev_b32 v{EP+11}, 16, v{EP+11}")
    a(f"s_waitcnt lgkmcnt(10)")
    for t in range(5): a(f"ds_read_b64_tr_b16 {vr(AV+2*t,2)}, v{EP+3+t}")
    for si in range(3):
        if si: a(f"s_waitcnt lgkmcnt({15 - 5*si})")
        for r in range(0, 20, 2): a(f"v_pk_add_f32 {vr(HF+r,2)}, {vr(HF+r,2)}, {vr(ACC+20*si+r,2)}")
    a("s_waitcnt lgkmcnt(0)")
    for t in range(5):
        x = EP + 12
        a(f"v_lshlrev_b32 v{x}, 16, v{AV+2*t}\nv_and_b32 v{x+1}, 0xffff0000, v{AV+2*t}\nv_lshlrev_b32 v{x+2}, 16, v{AV+2*t+1}\nv_and_b32 v{x+3}, 0xffff0000, v{AV+2*t+1}")
        for e in range(4): a(f"v_mul_f32 v{x+e}, v{EP+10}, v{x+e}")
        for e in range(4): a(f"v_fmac_f32 v{x+e}, v{EP+11}, v{HF+4*t+e}")
        a(f"v_cvt_pk_bf16_f32 v{AV+2*t}, v{x}, v{x+1}\nv_cvt_pk_bf16_f32 v{AV+2*t+1}, v{x+2}, v{x+3}")
        a(f"buffer_store_dwordx2 {vr(AV+2*t,2)}, v5, {sr(dOut,4)}, s{sT} offen offset:{32*t}")
    ts(a)
    if FINE:
        a("s_waitcnt vmcnt(0)")
        ts(a)

def wrap_prio(lines, lo):
    out = []; hi = False
    isvm = lambda x: x.strip().startswith(("buffer_", "global_"))
    for i, x in enumerate(lines):
        if isvm(x) and not hi:
            out.append("    s_setprio 3"); hi = True
        out.append(x)
        if hi and isvm(x):
            nxt = [y for y in lines[i+1:i+4]]
            if not any(isvm(y) for y in nxt) or any(y.endswith(":") or "branch" in y or "barrier" in y or "waitcnt" in y for y in nxt[:1]):
                out.append(f"    s_setprio {lo}"); hi = False
    return out
def header_comment():
    return open("cdna_kernels/" + NAME + ".s.ref").read().split("; Override launch")[0]

def build(fn):
    a = Asm()
    K = NAME + "_kernel"
    a(header_comment())
    a(f"; @launch grid=({GRID},1,1) block=(512,1,1) lds={LDS_BYTES}")
    a('.amdgcn_target "amdgcn-amd-amdhsa--gfx950"\n.text')
    a(kernel_header(K))
    if FINE: a("s_memrealtime s[96:97]")
    a("s_load_dwordx16 s[16:31], s[0:1], 0\ns_load_dwordx16 s[32:47], s[0:1], 64")
    a(f"s_cmp_ge_u32 s2, {GRID}\ns_cbranch_scc1 L_end")
    if OPT["scr"]: a("s_lshr_b32 s10, s2, 5\ns_xor_b32 s2, s2, s10")
    a("v_lshrrev_b32 v2, 6, v0\nv_and_b32 v1, 63, v0")
    a(f"v_readfirstlane_b32 s{sWave}, v2")
    if OPT["cpf"]:
        a(f"s_cmp_lt_u32 s2, 224\ns_cbranch_scc1 L_ncp\ns_getpc_b64 s[12:13]\nL_pc:")
        a(f"v_lshlrev_b32 v3, 6, v0\nv_min_u32 v3, L_code_end-L_pc-4, v3\nglobal_load_dword v24, v3, s[12:13]\nL_ncp:")
    a(f"s_lshr_b32 s{sHalf}, s{sWave}, 2\ns_and_b32 s{sWave}, s{sWave}, 3")
    a(f"s_lshr_b32 s10, s2, 3\ns_and_b32 s11, s10, 3\ns_lshr_b32 s10, s10, 2")
    a(f"s_and_b32 s{sRb}, s2, 3\ns_lshl_b32 s{sRb}, s{sRb}, 2\ns_add_u32 s{sRb}, s{sRb}, s11")
    a(f"s_bfe_u32 s{sCg}, s2, 0x10002\ns_mul_i32 s{sCg}, s{sCg}, 7\ns_add_u32 s{sCg}, s{sCg}, s10")
    gemm1_addr(a)
    if FINE:
        a(f"s_waitcnt lgkmcnt(0)\nv_mov_b32 v{vTS}, 0\nv_writelane_b32 v{vTS}, s96, 63")
        ts(a, 0)
    a(f"s_cmp_ge_u32 s2, {NS}\ns_waitcnt lgkmcnt(0)\ns_cbranch_scc1 L_nok")
    kgen_loads(a)
    a("L_nok:")
    srd(a, dWs, pWs, WS_SPAN)
    srd(a, dDbg, pDbg, 256)
    srd(a, dU, pU, 2048*1280)
    a(f"s_cmp_eq_u32 s{sHalf}, 0\ns_cbranch_scc1 L_gh\ns_cmp_ge_u32 s2, {NS}\ns_cbranch_scc1 L_load")
    if OPT["late"]: a("s_waitcnt vmcnt(0)")
    if OPT["l2t"]: l2touch(a)
    a(f"s_branch L_kg\nL_gh:\ns_cmp_ge_u32 s2, 224\ns_cbranch_scc1 L_p")
    gemm1_head(a)
    a(f"s_cmp_ge_u32 s2, {NS}\ns_cbranch_scc1 L_gb")
    q0 = list(a.vq)
    a("L_kg:")
    kgen(a, len(a.vq))
    a(f"s_cmp_lg_u32 s{sHalf}, 0\ns_cbranch_scc1 L_s")
    kgen_partial(a)
    xunit_store(a)
    ts(a, 22)
    a.vq = q0
    a("s_branch L_gc\nL_gb:\ns_waitcnt vmcnt(0)\nL_gc:")
    for x in BURST_REST[:OPT["b2"]]:
        a(x[0]); a.vm(*x[1])
    del BURST_REST[:OPT["b2"]]
    a(f"L_g1:\ns_setprio {OPT['pG1']}")
    fine_n[0] = 1
    gemm1_loop(a)
    ts(a)
    a("L_g2:")
    if OPT["x_nog2"]:
        a("s_waitcnt vmcnt(0)"); ts(a, 7)
    else: gemm2(a)
    ts_flush(a)
    a("L_end:\ns_endpgm")
    for x in SLOW: a(x)
    a("L_s:")
    fine_n[0] = 1
    ssm(a)
    ts_flush(a)
    a("s_endpgm")
    a("L_p:")
    ptouch(a)
    fine_n[0] = 1
    pgate(a)
    a("s_branch L_g2")
    a("L_load:")
    fine_n[0] = 1
    loader(a)
    a("L_ldx:")
    ts_flush(a)
    a("s_endpgm")
    a("L_code_end:")
    a('.section .rodata,"a"')
    a(kernel_desc(K, 256))
    errs = check_hazards(a.lines)
    for e in errs: print("HAZARD:", e)
    open(fn, "w").write(a.text())
    print(fn, len(a.lines), "lines;", len(errs), "hazards")

if __name__ == "__main__":
    FINE = "--fine" in sys.argv
    for x in sys.argv[2:]:
        if "=" in x:
            k, v = x.split("="); OPT[k] = int(v)
    build(sys.argv[1])
```
